```python
import torch

def _softmax(x, axis=-1):
    return torch.softmax(x, dim=axis)
def _gelu(x):
    return torch.nn.functional.gelu(x, approximate="tanh")
def _silu(x):
    return torch.nn.functional.silu(x)
def _sigmoid(x):
    return torch.sigmoid(x)
def _layernorm(x, axis=-1, eps=1e-5):
    m = x.mean(dim=axis, keepdim=True)
    v = x.var(dim=axis, keepdim=True, unbiased=False)
    return (x - m) / torch.sqrt(v + eps)
def _scatter_add(tgt, idx, src, axis=0):
    return tgt.clone().index_add_(axis, idx, src)
def _segment_sum(src, seg, n):
    out = torch.zeros((n,) + src.shape[1:], dtype=src.dtype)
    return out.index_add_(0, seg, src)
def _pad(x, pw):
    flat = tuple(v for pair in reversed(pw) for v in pair)
    return torch.nn.functional.pad(x, flat)

kernel_name = 'parallel_sum__grouped_kv_mqa__dense_activation_gelu__prompt'

def setup_inputs():

    _w = (lambda a: (lambda t: t.to(torch.bfloat16) if t.is_floating_point() else t)(torch.as_tensor(a)))
    def _A_setup():
        B, S, D, H = 1, 2048, 512, 32
        Dh = D // H
        return {
            "x": _w((lambda *s: torch.randn(*s, dtype=torch.bfloat16) * 0.05)(B, S, D)),
            "wq": _w((lambda *s: torch.randn(*s, dtype=torch.bfloat16) * 0.05)(D, H * Dh)),
            "wk": _w((lambda *s: torch.randn(*s, dtype=torch.bfloat16) * 0.05)(D, Dh)),
            "wv": _w((lambda *s: torch.randn(*s, dtype=torch.bfloat16) * 0.05)(D, Dh)),
            "wo": _w((lambda *s: torch.randn(*s, dtype=torch.bfloat16) * 0.05)(H * Dh, D)),
        }
    _A_in = _A_setup()

    def _B_setup():
        B, S, D, F = 1, 2048, 512, 1792
        return {
            "x": _w((lambda *s: torch.randn(*s, dtype=torch.bfloat16) * 0.05)(B, S, D)),
            "w1": _w((lambda *s: torch.randn(*s, dtype=torch.bfloat16) * 0.8)(D, F) * (D ** -0.5)),
            "b1": _w((lambda *s: torch.randn(*s, dtype=torch.bfloat16) * 12.8)(F) * 0.01),
            "w2": _w((lambda *s: torch.randn(*s, dtype=torch.bfloat16) * 0.8)(F, D) * (F ** -0.5)),
            "b2": _w((lambda *s: torch.randn(*s, dtype=torch.bfloat16) * 12.8)(D) * 0.01),
        }
    _B_in = _B_setup()

    return {
        "A_x": _A_in["x"],
        "A_wq": _A_in["wq"],
        "A_wk": _A_in["wk"],
        "A_wv": _A_in["wv"],
        "A_wo": _A_in["wo"],
        "B_x": _B_in["x"],
        "B_w1": _B_in["w1"],
        "B_b1": _B_in["b1"],
        "B_w2": _B_in["w2"],
        "B_b2": _B_in["b2"],
    }

def reference(A_x, A_wq, A_wk, A_wv, A_wo, B_x, B_w1, B_b1, B_w2, B_b2):
    def _A_ref(x, wq, wk, wv, wo):
        B, S, D = x.shape
        H = 32
        Dh = D // H
        q = (lambda x, *d: x.permute(*d))((x @ wq).reshape(B, S, H, Dh), 0, 2, 1, 3)
        k = x @ wk
        v = x @ wv
        scores = torch.einsum("bhqd,bkd->bhqk", q, k) * (Dh ** -0.5)
        p = _softmax(scores, axis=-1)
        o = torch.einsum("bhqk,bkd->bhqd", p, v)
        return (lambda x, *d: x.permute(*d))(o, 0, 2, 1, 3).reshape(B, S, H * Dh) @ wo

    def _B_ref(x, w1, b1, w2, b2):
        h = torch.einsum("bsd,df->bsf", x, w1) + b1
        h = _gelu(h)
        return torch.einsum("bsf,fd->bsd", h, w2) + b2

    x = A_x
    xn = _layernorm(x, axis=-1)
    return x + _A_ref(xn, A_wq, A_wk, A_wv, A_wo) + _B_ref(xn, B_w1, B_b1, B_w2, B_b2)
```

```python
import re

class Counter:
    def __init__(self, a, name, maxv):
        self.a = a; self.name = name; self.maxv = maxv; self.q = []
    def issue(self, tag):
        self.q.append(tag)
    def need(self, *tags):
        last = -1
        for i, t in enumerate(self.q):
            if t in tags: last = i
        if last < 0: return None
        return len(self.q) - 1 - last
    def wait(self, *tags):
        n = self.need(*tags)
        if n is None: return
        n = min(n, self.maxv)
        self.a(f"s_waitcnt {self.name}({n})")
        self.q = self.q[len(self.q) - n:] if n else []
    def wait_all(self):
        self.a(f"s_waitcnt {self.name}(0)")
        self.q = []
    def reset(self):
        self.q = []

class Asm:
    def __init__(self):
        self.lines = []
        self.vm = Counter(self, "vmcnt", 63)
        self.lg = Counter(self, "lgkmcnt", 15)
        self.uid = 0
    def __call__(self, s):
        for l in s.split("\n"):
            l = l.strip()
            if l: self.lines.append(l)
    def label(self, name):
        self.lines.append(name + ":")
    def newlabel(self, base):
        self.uid += 1
        return f"L_{base}_{self.uid}"
    def text(self):
        out = []
        for l in self.lines:
            out.append(l if (l.endswith(":") or l.startswith(".") or l.startswith(";")) else "    " + l)
        return "\n".join(out) + "\n"

def vr(a, n=1):
    return f"v{a}" if n == 1 else f"v[{a}:{a+n-1}]"
def sr(a, n=1):
    return f"s{a}" if n == 1 else f"s[{a}:{a+n-1}]"

_REG = re.compile(r"\b([vsa])(?:(\d+)\b|\[(\d+):(\d+)\])")
TRANS = ("v_exp_f32", "v_log_f32", "v_rcp_f32", "v_rsq_f32", "v_sqrt_f32", "v_sin_f32", "v_cos_f32")
def regs(op):
    r = set()
    for m in _REG.finditer(op):
        k = m.group(1)
        if m.group(2) is not None: r.add((k, int(m.group(2))))
        else: r.update((k, i) for i in range(int(m.group(3)), int(m.group(4)) + 1))
    if re.search(r"\bvcc\b", op): r.add(("s", "vcc"))
    if re.search(r"\bexec\b", op): r.add(("s", "exec"))
    if re.search(r"\bm0\b", op): r.add(("s", "m0"))
    return r

class I:
    def __init__(self, text):
        self.text = text
        t = text.split(";")[0].strip()
        p = t.split(None, 1)
        self.op = p[0]
        rest = p[1] if len(p) > 1 else ""
        ops = [o.strip() for o in re.split(r",(?![^\[]*\])", rest)] if rest else []
        self.ops = ops
        op = self.op
        self.mfma = op.startswith("v_mfma") or op.startswith("v_smfmac")
        self.smf = op.startswith("v_smfmac")
        self.valu = op.startswith("v_") and not self.mfma
        self.trans = any(op.startswith(x) for x in TRANS)
        self.dl = op.startswith("v_dot")
        self.dpp = "_dpp" in op or "quad_perm" in t or "row_" in t
        self.perml = op.startswith("v_permlane")
        self.rdlane = op.startswith("v_readlane") or op.startswith("v_readfirstlane")
        self.vmem = op.startswith("buffer_") or op.startswith("global_")
        self.ds = op.startswith("ds_")
        self.salu = op.startswith("s_")
        self.ldsdma = self.vmem and (" lds" in t or "_lds_" in op)
        self.passes = 0
        if self.mfma: self.passes = 8 if "32x32" in op else 4
        self.w = set(); self.r = set(); self.srcc = set(); self.ab = set(); self.stdata = set()
        R = [regs(o) for o in ops]
        allr = lambda xs: set().union(*xs) if xs else set()
        if self.mfma:
            self.w = R[0]; self.ab = R[1] | R[2]
            if self.smf: self.srcc = R[0]; self.ab |= R[3]
            else: self.srcc = R[3]
            self.r = self.ab | self.srcc
        elif self.valu:
            if op.startswith("v_cmp"):
                self.w = R[0]; self.r = allr(R[1:])
                if op.startswith("v_cmpx"): self.w |= {("s", "exec")}
            elif self.perml and "swap" in op:
                self.w = R[0] | R[1]; self.r = R[0] | R[1]
            elif op.startswith(("v_add_co", "v_sub_co", "v_addc_co")):
                self.w = R[0] | R[1]; self.r = allr(R[2:])
            else:
                self.w = R[0]; self.r = allr(R[1:])
                if op.startswith(("v_fmac", "v_dot2c", "v_pk_fmac")): self.r |= R[0]
                if self.dpp: self.r |= R[0]
        elif self.vmem:
            if "store" in op or "atomic" in op:
                self.r = allr(R)
                d = R[0] if op.startswith("buffer") else R[1]
                if "x4" in op or "x3" in op: self.stdata = d
                if "atomic" in op and "sc0" in t: self.w = R[0]
            elif self.ldsdma or op.startswith(("buffer_wbl2", "buffer_inv")):
                self.r = allr(R)
            else:
                self.w = R[0]; self.r = allr(R[1:])
        elif self.ds:
            if op.startswith(("ds_read", "ds_bpermute", "ds_permute", "ds_swizzle")) or "_rtn" in op:
                self.w = R[0]; self.r = allr(R[1:])
            else:
                self.r = allr(R)
        elif self.salu:
            if op.startswith(("s_cmp", "s_bitcmp", "s_waitcnt", "s_nop", "s_barrier", "s_branch", "s_cbranch", "s_setprio", "s_sleep", "s_endpgm")):
                self.r = allr(R)
            else:
                self.w = R[0] if R else set(); self.r = allr(R[1:])
                if "saveexec" in op: self.w |= {("s", "exec")}
        self.states = 1
        if op == "s_nop": self.states = int(ops[0], 0) + 1

def vonly(s): return {x for x in s if x[0] in "va"}
def sonly(s): return {x for x in s if x[0] == "s"}

def required(p, c):
    out = []
    if p.valu and c.mfma and vonly(p.w) & c.r: out.append((3 if p.dl else 2, "VALU->MFMA src"))
    if p.mfma:
        big = {8: 12, 4: 8}[p.passes]; ovl = {8: 10, 4: 6}[p.passes]; war = {8: 7, 4: 3}[p.passes]
        if c.mfma:
            if p.w & c.ab: out.append((big, "MFMA D->MFMA A/B"))
            if p.w & c.srcc and not (p.w == c.srcc and p.passes == c.passes): out.append((ovl, "MFMA D->partial C"))
            if p.w & c.w and not (p.w & c.srcc) : out.append((big, "MFMA D->MFMA D WAW (conservative)"))
        elif c.valu:
            if p.w & (c.r | c.w): out.append((big, "MFMA D->VALU"))
            if p.srcc & c.w: out.append((war, "MFMA C WAR"))
        elif c.vmem or c.ds:
            if p.w & (c.r | c.w): out.append((big, "MFMA D->mem"))
    if p.trans and c.valu and not c.trans and vonly(p.w) & c.r: out.append((1, "trans->VALU"))
    if p.valu and c.valu and c.dpp and vonly(p.w) & c.r: out.append((2, "VALU->DPP"))
    if p.valu and c.perml and vonly(p.w) & c.r: out.append((2, "VALU->permlane"))
    if p.valu and c.rdlane and vonly(p.w) & c.r: out.append((1, "VALU->readlane"))
    if p.valu and sonly(p.w):
        if c.valu and sonly(p.w) & c.r: out.append((2, "VALU sgpr->VALU const"))
        if c.vmem and sonly(p.w) & c.r: out.append((5, "VALU sgpr->VMEM"))
        if ("s", "exec") in p.w and (c.mfma or c.rdlane or c.perml): out.append((4, "VALU exec"))
        if ("s", "exec") in p.w and c.dpp: out.append((5, "VALU exec->DPP"))
    if p.dl and (c.valu or c.mfma):
        same = c.op == p.op
        if same:
            srcab = regs(c.ops[1]) | regs(c.ops[2])
            if vonly(p.w) & srcab: out.append((3, "DL->same op A/B"))
        elif vonly(p.w) & (c.r | c.w): out.append((3, "DL->other"))
    if p.dl and (c.vmem or c.ds) and vonly(p.w) & c.r: out.append((3, "DL->mem (conservative)"))
    if p.salu and ("s", "m0") in p.w and c.ldsdma: out.append((1, "m0->lds dma"))
    if p.stdata and p.stdata & c.w: out.append((2 if c.valu else 1, "store data WAR"))
    return max(out) if out else (0, "")

def lint_seq(seq, where=""):
    probs = []
    for j, c in enumerate(seq):
        dist = 0
        for i in range(j - 1, max(-1, j - 24), -1):
            p = seq[i]
            need, why = required(p, c)
            if need > dist: probs.append(f"{where}{why}: need {need} have {dist}: [{p.text}] -> [{c.text}]")
            dist += p.states
            if dist >= 20: break
    return probs

def lint(lines):
    ins = []; labels = {}
    for l in lines:
        if l.startswith(";") or l.startswith("."): continue
        if l.endswith(":"): labels[l[:-1]] = len(ins); continue
        ins.append(I(l))
    probs = []
    seg = []
    for x in ins:
        seg.append(x)
        if x.op in ("s_branch", "s_endpgm"):
            probs += lint_seq(seg); seg = []
    probs += lint_seq(seg)
    for k, x in enumerate(ins):
        if x.op.startswith("s_cbranch") or x.op == "s_branch":
            t = labels.get(x.ops[0])
            if t is None: continue
            lo = k
            while lo > 0 and k - lo < 24 and ins[lo - 1].op not in ("s_branch", "s_endpgm"): lo -= 1
            hi = t
            while hi < len(ins) and hi - t < 24:
                hi += 1
                if ins[hi - 1].op in ("s_branch", "s_endpgm"): break
            pre = ins[lo:k + 1]; post = ins[t:hi]
            both = pre + post
            for pr in lint_seq(both, "edge: "):
                if pr[6:] not in probs and pr not in probs: probs.append(pr)
    return sorted(set(probs), key=probs.index)
```

```python
import sys, math, struct
from asmlib import *

NAME = "parallel_sum__grouped_kv_mqa__dense_activation_gelu__prompt"
def f2u(x): return struct.unpack("<I", struct.pack("<f", x))[0]
LOG2E = 1.4426950408889634

XN, XN_T, XN_KS, XN_H = 0, 33792, 1056, 528
WQ = 67584
WK = WQ + 65536
RS = WK + 16384
QX = RS + 256
CNT = QX + 8192
LDS_BYTES = CNT + 128
GR0, GR_SZ = WQ, 20480
RED, RED_SLOT = 0, 2304
FIN_ROW = 272
WS_KV = 0
WS_Q = 0x100000
WS_O = 0x300000
WS_H = 0x500000
WS_FLAG = 0xD00000
WS_BYTES = 0x1000000
pX, pWQ, pWK, pWV, pWO, pBX, pW1, pB1, pW2, pB2, pOUT, pDBG, pWS = range(16, 42, 2)
sWave, sS, sTB, sT0, sT1, sT2, sT3 = 3, 4, 5, 6, 7, 8, 9
sKQ, sTG, sG = 10, 11, 10
sOff, sOff2, sRing, sCnt = 12, 13, 14, 15
rX, rWS, rA, rB, rC = 44, 48, 52, 56, 60
sK0 = 64
sMaskV = 72
NV = 168

class Gen:
    def __init__(self, mimic=True):
        self.a = Asm()
        self.mimic = mimic

    def srd(self, r, ptr, nbytes):
        a = self.a
        a(f"s_mov_b32 s{r}, s{ptr}\ns_mov_b32 s{r+1}, s{ptr+1}\ns_mov_b32 s{r+2}, {nbytes:#x}\ns_mov_b32 s{r+3}, 0x20000")

    def prologue(self, end):
        a = self.a
        a(f"""s_cmp_ge_u32 s2, 256
        s_cbranch_scc1 {end}
        s_load_dwordx16 s[16:31], s[0:1], 0
        s_load_dwordx8 s[32:39], s[0:1], 64
        s_load_dwordx2 s[40:41], s[0:1], 96
        v_lshrrev_b32 v1, 6, v0
        v_and_b32 v0, 63, v0
        v_readfirstlane_b32 s{sWave}, v1
        s_lshr_b32 s{sT0}, s2, 3
        s_and_b32 s{sS}, s{sT0}, 7
        s_lshr_b32 s{sT0}, s{sT0}, 3
        s_and_b32 s{sTB}, s2, 7
        s_lshl_b32 s{sTB}, s{sTB}, 2
        s_add_u32 s{sTB}, s{sTB}, s{sT0}
        s_waitcnt lgkmcnt(0)""")
        self.srd(rWS, pWS, WS_BYTES)

    def red8(self, v):
        a = self.a
        for m in ("quad_perm:[1,0,3,2]", "quad_perm:[2,3,0,1]", "row_half_mirror"):
            a("s_nop 1")
            a(f"v_add_f32_dpp v{v}, v{v}, v{v} {m} row_mask:0xf bank_mask:0xf")

    def rnd_bf16(self, v):
        a = self.a
        a(f"v_cvt_pk_bf16_f32 v{v}, v{v}, v{v}\nv_lshlrev_b32 v{v}, 16, v{v}")

    def ln_load(self):
        a = self.a
        X = 8
        self.srd(rX, pX, 2048 * 1024)
        a(f"""v_lshrrev_b32 v1, 3, v0
        v_and_b32 v2, 7, v0
        v_lshlrev_b32 v3, 10, v1
        v_lshl_add_u32 v3, v2, 4, v3
        s_lshl_b32 s{sT0}, s{sTB}, 3
        s_add_u32 s{sT0}, s{sT0}, s{sWave}
        s_lshl_b32 s{sT0}, s{sT0}, 13""")
        for i in range(8):
            a(f"buffer_load_dwordx4 {vr(X+4*i,4)}, v3, s[{rX}:{rX+3}], s{sT0} offen offset:{128*i}")
            a.vm.issue(("x", i))

    def ln_compute(self):
        a = self.a
        X, T = 8, 40
        a(f"""s_mov_b32 s{sK0}, 0x3f803f80
        s_mov_b32 s{sK0+1}, 0x00003f80
        s_mov_b32 s{sK0+2}, 0x3f800000
        s_lshr_b32 s{sT1}, s{sWave}, 2
        s_mul_i32 s{sT1}, s{sT1}, {XN_T}
        s_and_b32 s{sT2}, s{sWave}, 3
        s_lshl_b32 s{sT2}, s{sT2}, 7
        s_add_u32 s{sT1}, s{sT1}, s{sT2}
        v_lshrrev_b32 v4, 1, v2
        v_mul_u32_u24 v4, {XN_KS}, v4
        v_and_b32 v5, 1, v2
        v_mul_u32_u24 v5, {XN_H}, v5
        v_add3_u32 v4, v4, v5, s{sT1}
        v_lshl_add_u32 v4, v1, 4, v4
        s_lshl_b32 s{sT2}, s{sWave}, 5
        s_add_u32 s{sT2}, s{sT2}, {RS}
        v_lshl_add_u32 v5, v1, 2, s{sT2}""")
        for i in range(32):
            if i % 4 == 0: a.vm.wait(("x", i // 4))
            acc = 6 + (i & 1)
            a(f"v_dot2_f32_bf16 v{acc}, v{X+i}, s{sK0}, " + ("0" if i < 2 else f"v{acc}"))
        a("s_nop 2\nv_add_f32 v6, v6, v7")
        self.red8(6)
        a(f"v_mul_f32 v6, {f2u(-1.0/512):#x}, v6")
        if self.mimic: self.rnd_bf16(6)
        def cvt(i):
            t = T + 2 * (i % 4)
            a(f"v_cvt_pk_bf16_f32 v{X+i}, v{t}, v{t+1}")
            if i % 4 == 3:
                k = i // 4
                a(f"ds_write_b128 v4, {vr(X+4*k,4)} offset:{XN + k*4*XN_KS}")
        for i in range(32):
            t = T + 2 * (i % 4)
            a(f"v_dot2_f32_bf16 v{t}, v{X+i}, s{sK0+1}, v6\nv_dot2_f32_bf16 v{t+1}, v{X+i}, s{sK0+2}, v6")
            if i >= 2: cvt(i - 2)
        a("s_nop 0"); cvt(30); cvt(31)
        a("s_nop 0")
        for i in range(32):
            acc = 6 + (i & 1)
            a(f"v_dot2_f32_bf16 v{acc}, v{X+i}, v{X+i}, " + ("0" if i < 2 else f"v{acc}"))
        a("s_nop 2\nv_add_f32 v6, v6, v7")
        self.red8(6)
        if self.mimic:
            a(f"v_mul_f32 v6, {f2u(1.0/512):#x}, v6")
            self.rnd_bf16(6)
            a(f"v_add_f32 v6, {f2u(1e-5):#x}, v6")
            self.rnd_bf16(6)
            a("v_sqrt_f32 v6, v6\ns_nop 0")
            self.rnd_bf16(6)
            a("v_rcp_f32 v6, v6")
        else:
            a(f"v_mov_b32 v7, {f2u(1e-5):#x}\nv_fmac_f32 v7, {f2u(1.0/512):#x}, v6\nv_rsq_f32 v6, v7")
        a("s_nop 0\nds_write_b32 v5, v6\ns_waitcnt lgkmcnt(0)")

    def dma_voff(self, v, t, stride):
        self.a(f"""v_lshrrev_b32 v{v}, 3, v0
        v_and_b32 v{t}, 2, v{v}
        v_lshlrev_b32 v{t}, 1, v{t}
        v_xor_b32 v{t}, v{t}, v0
        v_and_b32 v{t}, 7, v{t}
        v_mul_u32_u24 v{v}, {stride}, v{v}
        v_lshl_add_u32 v{v}, v{t}, 4, v{v}""")

    def tr_addr(self, v, t, perm, sbase, sct=None):
        a = self.a
        a(f"""v_lshrrev_b32 v{v}, 5, v0
        v_lshlrev_b32 v{v}, {9 if perm else 10}, v{v}
        v_bfe_u32 v{t}, v0, 2, 2
        v_lshl_add_u32 v{v}, v{t}, 7, v{v}
        v_lshrrev_b32 v{t}, 1, v{t}
        v_lshl_add_u32 v{v}, v{t}, 6, v{v}
        v_bfe_u32 v{t}, v0, 4, 1
        v_lshl_add_u32 v{v}, v{t}, 5, v{v}
        v_and_b32 v{t}, 3, v0
        v_lshl_add_u32 v{v}, v{t}, 3, v{v}""")
        if sct is not None: a(f"v_xor_b32 v{v}, s{sct}, v{v}")
        return (v, sbase)

    def xn_addr(self, v, t):
        self.a(f"""v_lshrrev_b32 v{t}, 5, v0
        v_mul_u32_u24 v{t}, {XN_H}, v{t}
        v_and_b32 v{v}, 31, v0
        v_lshl_add_u32 v{v}, v{v}, 4, v{t}""")

    def stage_qk(self):
        a = self.a
        self.srd(rA, pWQ, 512 * 1024)
        a(f"""s_bitcmp1_b32 s{sS}, 0
        s_cselect_b32 s{rB}, s{pWV}, s{pWK}
        s_cselect_b32 s{rB+1}, s{pWV+1}, s{pWK+1}
        s_mov_b32 s{rB+2}, 16384
        s_mov_b32 s{rB+3}, 0x20000
        v_lshlrev_b32 v2, 4, v0
        s_lshl_b32 s{sT0}, s{sG}, 12
        s_add_u32 m0, s{sT0}, {WK}""")
        self.dma_voff(1, 3, 1024)
        for i in range(4):
            a(f"buffer_load_dwordx4 v2, s[{rB}:{rB+3}], s{sT0} offen offset:{1024*i} lds"); a.vm.issue("wk")
        a(f"""s_lshl_b32 s{sT0}, s{sG}, 13
        s_lshl_b32 s{sT1}, s{sS}, 7
        s_add_u32 s{sT0}, s{sT0}, s{sT1}
        s_lshl_b32 s{sT1}, s{sG}, 10""")
        for i in range(16):
            a(f"s_add_u32 m0, s{sT1}, {WQ + 4096*i}")
            if i: a(f"s_add_u32 s{sT0}, s{sT0}, 32768")
            else: a("s_nop 0")
            a(f"buffer_load_dwordx4 v1, s[{rA}:{rA+3}], s{sT0} offen lds"); a.vm.issue("wq")

    def q_job(self, split):
        a = self.a
        ACC, A0, B0, PF = 72, 8, 24, 3
        a(f"""s_lshr_b32 s{sT0}, s{sWave}, 1
        s_lshl_b32 s{sT1}, s{sT0}, 6
        s_and_b32 s{sT2}, s{sWave}, 1
        s_mul_i32 s{sT3}, s{sT2}, {XN_T}""")
        self.tr_addr(1, 2, False, None, sct=sT1)
        a(f"v_add_u32 v1, {WQ}, v1")
        self.xn_addr(3, 2)
        a(f"""v_add_u32 v3, s{sT3}, v3
        v_and_b32 v4, 31, v0
        s_lshl_b32 s{sT3}, s{sT2}, 7
        s_add_u32 s{sT3}, s{sT3}, {RS}
        v_lshl_add_u32 v4, v4, 2, s{sT3}
        ds_read_b32 v5, v4""")
        a.lg.issue("r")
        def rd(ks):
            A = A0 + 4 * (ks % 4); B = B0 + 4 * (ks % 4)
            a(f"ds_read_b64_tr_b16 {vr(A,2)}, v1 offset:{ks*2048}"); a.lg.issue(ks)
            a(f"ds_read_b64_tr_b16 {vr(A+2,2)}, v1 offset:{ks*2048+512}"); a.lg.issue(ks)
            a(f"ds_read_b128 {vr(B,4)}, v3 offset:{XN + ks*XN_KS}"); a.lg.issue(ks)
        for ks in range(PF): rd(ks)
        for ks in range(32):
            a.lg.wait(ks)
            A = A0 + 4 * (ks % 4); B = B0 + 4 * (ks % 4)
            a(f"v_mfma_f32_32x32x16_bf16 {vr(ACC,16)}, {vr(A,4)}, {vr(B,4)}, " + ("0" if ks == 0 else vr(ACC, 16)))
            if ks + PF < 32: rd(ks + PF)
        a(f"v_mul_f32 v5, {f2u(0.25*LOG2E):#x}, v5")
        a(f"""s_lshl_b32 s{sT2}, s{sT2}, 2
        s_lshl_b32 s{sT0}, s{sT0}, 1
        v_lshlrev_b32 v6, 4, v0""")
        if split:
            a(f"""s_lshr_b32 s{sT2}, s{sT2}, 2
            s_lshl_b32 s{sT1}, s{sTB}, 1
            s_add_u32 s{sT1}, s{sT1}, s{sT2}
            s_lshl_b32 s{sT1}, s{sT1}, 5
            s_lshl_b32 s{sT2}, s{sS}, 2
            s_add_u32 s{sT1}, s{sT1}, s{sT2}
            s_add_u32 s{sT1}, s{sT1}, s{sT0}
            s_lshl_b32 s{sT1}, s{sT1}, 10
            s_add_u32 s{sT1}, s{sT1}, {WS_Q}""")
        else:
            a(f"""s_add_u32 s{sT0}, s{sT0}, s{sT2}
            s_lshl_b32 s{sT0}, s{sT0}, 10
            s_add_u32 s{sT0}, s{sT0}, {QX}
            v_add_u32 v6, s{sT0}, v6""")
        a("s_nop 7")
        for i in range(0, 16, 2):
            a(f"v_pk_mul_f32 {vr(ACC+i,2)}, {vr(ACC+i,2)}, v[4:5] op_sel:[0,1] op_sel_hi:[1,1]")
        for i in range(8):
            a(f"v_cvt_pk_bf16_f32 v{8+i}, v{ACC+2*i}, v{ACC+2*i+1}")
        if split:
            a(f"buffer_store_dwordx4 v[8:11], v6, s[{rWS}:{rWS+3}], s{sT1} offen")
            a(f"buffer_store_dwordx4 v[12:15], v6, s[{rWS}:{rWS+3}], s{sT1} offen offset:1024")
        else:
            a(f"ds_write_b128 v6, v[8:11]\nds_write_b128 v6, v[12:15] offset:1024\ns_waitcnt lgkmcnt(0)")
        a.lg.reset()

    def kv_job(self, sc1):
        a = self.a
        ACC, W0, X0, PF = 72, 8, 24, 3
        a(f"""s_lshr_b32 s{sT0}, s{sS}, 2
        s_mul_i32 s{sT0}, s{sT0}, {XN_T}
        s_bfe_u32 s{sT1}, s{sS}, 0x10001
        s_lshl_b32 s{sT2}, s{sT1}, 8
        s_add_u32 s{sT0}, s{sT0}, s{sT2}
        v_lshrrev_b32 v1, 4, v0
        v_and_b32 v2, 15, v0
        v_lshrrev_b32 v3, 1, v1
        v_mul_u32_u24 v3, {XN_KS}, v3
        v_and_b32 v4, 1, v1
        v_mul_u32_u24 v4, {XN_H}, v4
        v_add3_u32 v3, v3, v4, s{sT0}
        v_lshl_add_u32 v3, v2, 4, v3
        v_lshlrev_b32 v4, 8, v1
        v_lshl_add_u32 v4, v2, 3, v4
        v_add_u32 v4, {WK}, v4""")
        lab_v = a.newlabel("kvV"); lab_e = a.newlabel("kvE")
        def loop(isv):
            def rd(kk):
                W = W0 + 4 * (kk % 4); Xr = X0 + 4 * (kk % 4)
                a(f"ds_read_b64_tr_b16 {vr(W,2)}, v4 offset:{kk*1024}"); a.lg.issue(kk)
                a(f"ds_read_b64_tr_b16 {vr(W+2,2)}, v4 offset:{kk*1024+128}"); a.lg.issue(kk)
                a(f"ds_read_b128 {vr(Xr,4)}, v3 offset:{XN + kk*2*XN_KS}"); a.lg.issue(kk)
            for kk in range(PF): rd(kk)
            for kk in range(16):
                a.lg.wait(kk)
                W = W0 + 4 * (kk % 4); Xr = X0 + 4 * (kk % 4)
                A, B = (Xr, W) if isv else (W, Xr)
                a(f"v_mfma_f32_16x16x32_bf16 {vr(ACC,4)}, {vr(A,4)}, {vr(B,4)}, " + ("0" if kk == 0 else vr(ACC, 4)))
                if kk + PF < 16: rd(kk + PF)
        a(f"""s_lshr_b32 s{sT0}, s{sS}, 1
        s_lshl_b32 s{sT2}, s{sT0}, 6
        s_add_u32 s{sT2}, s{sT2}, {RS}
        s_lshr_b32 s{sT0}, s{sS}, 2
        s_lshl_b32 s{sT3}, s{sTB}, 1
        s_add_u32 s{sT3}, s{sT3}, s{sT0}
        s_lshl_b32 s{sT3}, s{sT3}, 11
        s_bitcmp1_b32 s{sS}, 0
        s_cbranch_scc1 {lab_v}""")
        a(f"v_lshl_add_u32 v5, v2, 2, s{sT2}\nds_read_b32 v40, v5"); a.lg.issue("r")
        loop(False)
        a(f"""v_and_b32 v5, 1, v1
        v_lshlrev_b32 v5, 9, v5
        v_lshl_add_u32 v5, v2, 4, v5
        v_lshrrev_b32 v6, 1, v1
        v_lshl_add_u32 v5, v6, 3, v5
        s_lshl_b32 s{sT1}, s{sT1}, 8
        s_add_u32 s{sT3}, s{sT3}, s{sT1}
        v_mov_b32 v41, v40
        v_mov_b32 v42, v40
        v_mov_b32 v43, v40
        s_branch {lab_e}""")
        a.lg.reset()
        a.label(lab_v)
        a(f"v_lshl_add_u32 v5, v1, 4, s{sT2}\nds_read_b128 v[40:43], v5"); a.lg.issue("r")
        loop(True)
        a(f"""v_lshrrev_b32 v5, 1, v1
        v_lshlrev_b32 v5, 8, v5
        v_lshl_add_u32 v5, v2, 4, v5
        v_and_b32 v6, 1, v1
        v_lshl_add_u32 v5, v6, 3, v5
        s_lshl_b32 s{sT1}, s{sT1}, 9
        s_add_u32 s{sT3}, s{sT3}, s{sT1}
        s_add_u32 s{sT3}, s{sT3}, 1024
        s_nop 1""")
        a.lg.reset()
        a.label(lab_e)
        a(f"""v_pk_mul_f32 {vr(ACC,2)}, {vr(ACC,2)}, v[40:41]
        v_pk_mul_f32 {vr(ACC+2,2)}, {vr(ACC+2,2)}, v[42:43]
        v_cvt_pk_bf16_f32 v8, v{ACC}, v{ACC+1}
        v_cvt_pk_bf16_f32 v9, v{ACC+2}, v{ACC+3}
        buffer_store_dwordx2 v[8:9], v5, s[{rWS}:{rWS+3}], s{sT3} offen offset:{WS_KV}{' sc1' if sc1 else ''}""")

    def ffn1(self, sc1):
        a = self.a
        ACC, SET0, NSET = 8, 72, 3
        BRAW, BF, RV, TMP = 120, 136, 152, 72
        NS = 10
        self.srd(rA, pW1, 512 * 3584)
        self.srd(rB, pB1, 3584)
        a(f"""s_and_b32 s{sT0}, s{sS}, 1
        s_add_u32 s{sT1}, s{sG}, s{sT0}
        s_and_b32 s{sT1}, s{sT1}, 3
        s_lshl_b32 s{sT1}, s{sT1}, 7
        s_mul_i32 s{sOff}, s{sS}, 448
        s_add_u32 s{sOff}, s{sOff}, s{sT1}
        s_lshl_b32 s{sT1}, s{sT0}, 6
        s_sub_u32 s{sOff}, s{sOff}, s{sT1}
        s_mov_b32 s{sOff2}, s{sOff}
        s_mul_i32 s{sRing}, s{sG}, {GR_SZ}
        s_add_u32 s{sRing}, s{sRing}, {GR0}
        s_cmp_eq_u32 s{sG}, 3
        s_cselect_b32 s{sT1}, s{sT1}, 0""")
        self.dma_voff(1, 2, 3584)
        self.tr_addr(2, 3, False, None, sct=sT1)
        a(f"v_add_u32 v2, s{sRing}, v2\nv_xor_b32 v3, 64, v2")
        self.xn_addr(4, 5)
        a(f"""v_and_b32 v5, 31, v0
        v_lshlrev_b32 v5, 2, v5
        v_add_u32 v5, {RS}, v5
        v_add_u32 v7, {XN_T}, v4
        v_lshrrev_b32 v6, 5, v0
        v_lshlrev_b32 v6, 3, v6
        s_add_u32 s{sOff2}, s{sOff2}, s{sT1}""")
        lab3 = a.newlabel("f1w3"); labe = a.newlabel("f1e")
        a(f"s_cmp_eq_u32 s{sG}, 3\ns_cbranch_scc1 {lab3}")
        def body(nct):
            a.vm.reset(); a.lg.reset()
            def dma(ks):
                for u in range(2):
                    a(f"s_add_u32 m0, s{sRing}, {(ks % NS)*2048 + u*1024}")
                    if ks or u: a(f"s_add_u32 s{sOff}, s{sOff}, {8*3584}")
                    else: a("s_nop 0")
                    a(f"buffer_load_dwordx4 v1, s[{rA}:{rA+3}], s{sOff} offen lds"); a.vm.issue(("w", ks))
            def rdlist(ks):
                A = SET0 + 16 * (ks % NSET); B = A + 8; o = (ks % NS) * 2048
                l = []
                for ct in range(nct):
                    l.append(f"ds_read_b64_tr_b16 {vr(A+4*ct,2)}, v{2+ct} offset:{o}")
                    l.append(f"ds_read_b64_tr_b16 {vr(A+4*ct+2,2)}, v{2+ct} offset:{o+512}")
                for tt in range(2):
                    l.append(f"ds_read_b128 {vr(B+4*tt,4)}, v{4+3*tt} offset:{XN + ks*XN_KS}")
                return l
            for ks in range(NS): dma(ks)
            for ct in range(nct):
                for q in range(4):
                    a(f"buffer_load_dwordx2 {vr(BRAW+8*ct+2*q,2)}, v6, s[{rB}:{rB+3}], s{sOff2} offen offset:{64*ct+16*q}"); a.vm.issue("b1")
            for tt in range(2):
                a(f"ds_read_b32 v{RV+2*tt}, v5 offset:{128*tt}"); a.lg.issue("r")
            for ks in range(2):
                a.vm.wait(("w", ks))
                for l in rdlist(ks): a(l); a.lg.issue(ks)
            for ks in range(32):
                if ks + 2 < 32: a.vm.wait(("w", ks + 2))
                a.lg.wait(ks)
                A = SET0 + 16 * (ks % NSET); B = A + 8
                rl = rdlist(ks + 2) if ks + 2 < 32 else []
                ms = [(ct, tt) for ct in range(nct) for tt in range(2)]
                per = -(-len(rl) // max(1, len(ms) - 1))
                for n, (ct, tt) in enumerate(ms):
                    c = ACC + 16 * (2 * ct + tt)
                    a(f"v_mfma_f32_32x32x16_bf16 {vr(c,16)}, {vr(A+4*ct,4)}, {vr(B+4*tt,4)}, " + ("0" if ks == 0 else vr(c, 16)))
                    for l in rl[n*per:(n+1)*per]: a(l); a.lg.issue(ks + 2)
                if ks + NS < 32: dma(ks + NS)
            a(f"""s_mov_b32 s{sK0}, {f2u(GC2):#x}
            s_mov_b32 s{sK0+1}, {f2u(GC2):#x}
            s_mov_b32 s{sK0+2}, 1.0
            s_mov_b32 s{sK0+3}, 1.0
            v_mov_b32 v{RV+4}, {f2u(GC1):#x}
            v_mov_b32 v{RV+5}, {f2u(GC1):#x}
            v_lshlrev_b32 v1, 4, v0
            s_lshl_b32 s{sT0}, s{sTB}, 1
            s_mul_i32 s{sT0}, s{sT0}, 112
            s_lshr_b32 s{sT1}, s{sOff2}, 5
            s_add_u32 s{sT0}, s{sT0}, s{sT1}
            s_lshl_b32 s{sT0}, s{sT0}, 10
            s_add_u32 s{sT0}, s{sT0}, {WS_H}
            s_add_u32 s{sT1}, s{sT0}, {112*1024}""")
            a.vm.wait("b1")
            for ct in range(nct):
                for q in range(8):
                    a(f"v_lshlrev_b32 v{BF+2*q}, 16, v{BRAW+8*ct+q}\nv_and_b32 v{BF+2*q+1}, 0xffff0000, v{BRAW+8*ct+q}")
                for tt in range(2):
                    c = ACC + 16 * (2 * ct + tt)
                    for half in range(2):
                        seqs = []
                        for p in range(4):
                            x = c + 8 * half + 2 * p; t = TMP + 2 * p; b = BF + 8 * half + 2 * p
                            seqs.append([
                                f"v_pk_fma_f32 {vr(x,2)}, {vr(x,2)}, {vr(RV+2*tt,2)}, {vr(b,2)} op_sel_hi:[1,0,1]",
                                f"v_pk_mul_f32 {vr(t,2)}, {vr(x,2)}, {vr(x,2)}",
                                f"v_pk_fma_f32 {vr(t,2)}, {vr(t,2)}, s[{sK0}:{sK0+1}], {vr(RV+4,2)}",
                                f"v_pk_mul_f32 {vr(t,2)}, {vr(t,2)}, {vr(x,2)}",
                                f"v_exp_f32 v{t}, v{t}", f"v_exp_f32 v{t+1}, v{t+1}",
                                f"v_pk_add_f32 {vr(t,2)}, {vr(t,2)}, s[{sK0+2}:{sK0+3}]",
                                f"v_rcp_f32 v{t}, v{t}", f"v_rcp_f32 v{t+1}, v{t+1}",
                                f"v_pk_mul_f32 {vr(t,2)}, {vr(t,2)}, {vr(x,2)}",
                                f"v_cvt_pk_bf16_f32 v{TMP+8+4*((2*tt+half)%2)+p}, v{t}, v{t+1}"])
                        for k in range(len(seqs[0])):
                            for s in seqs: a(s[k])
                        o = TMP + 8 + 4 * ((2 * tt + half) % 2)
                        a(f"buffer_store_dwordx4 {vr(o,4)}, v1, s[{rWS}:{rWS+3}], s{sT0+tt} offen offset:{(2*ct+half)*1024}{' sc1' if sc1 else ''}")
                        a.vm.issue("h")
        body(2)
        a(f"s_branch {labe}")
        a.label(lab3)
        body(1)
        a.label(labe)
        a.vm.reset(); a.lg.reset()

    O0, S0, Q0, KV0, VIDX, VK, VV = 8, 72, 104, 120, 144, 145, 146
    def attn_setup(self):
        a = self.a
        a(f"""s_and_b32 s{sKQ}, s{sWave}, 3
        s_lshr_b32 s{sTG}, s{sWave}, 2
        v_lshlrev_b32 v{self.VK}, 4, v0
        v_lshrrev_b32 v1, 5, v0
        v_and_b32 v2, 15, v0
        v_lshlrev_b32 v1, 8, v1
        v_lshl_add_u32 v{self.VV}, v2, 4, v1
        v_mov_b32 v{self.VIDX}, 0xdddd
        s_mov_b32 s{sMaskV}, 0x0000ffff
        s_mov_b32 s{sMaskV+1}, 0x0000ffff
        s_mov_b32 s{sMaskV+2}, 0x00110000
        s_mov_b32 s{sMaskV+3}, 0x00110000
        v_mov_b32 v1, 0
        v_mov_b32 v2, 0x3f803f80
        v_cndmask_b32 v1, v1, v2, s[{sMaskV+2}:{sMaskV+3}]""")
        for b in range(2):
            for i in range(4, 12): a(f"v_mov_b32 v{self.KV0+12*b+i}, v1")
        for i in range(64): a(f"v_mov_b32 v{self.O0+i}, 0")
        for i in range(8, 16): a(f"v_mov_b32 v{self.S0+16+i}, 0")

    def q_from_ws(self):
        a = self.a
        a(f"""s_lshl_b32 s{sT0}, s{sTB}, 1
        s_add_u32 s{sT0}, s{sT0}, s{sTG}
        s_lshl_b32 s{sT0}, s{sT0}, 5
        s_lshl_b32 s{sT1}, s{sS}, 2
        s_add_u32 s{sT0}, s{sT0}, s{sT1}""")
        for j in range(4):
            a(f"""s_add_u32 s{sT1}, s{sKQ}, {j}
            s_and_b32 s{sT1}, s{sT1}, 3
            s_add_u32 s{sT1}, s{sT1}, s{sT0}
            s_lshl_b32 s{sT1}, s{sT1}, 10
            s_add_u32 s{sT1}, s{sT1}, {WS_Q}
            buffer_load_dwordx4 {vr(self.Q0+4*j,4)}, v{self.VK}, s[{rWS}:{rWS+3}], s{sT1} offen""")

    def ldK(self, b, off):
        self.a(f"buffer_load_dwordx4 {vr(self.KV0+12*b,4)}, v{self.VK}, s[{rWS}:{rWS+3}], s{sOff} offen offset:{off} sc1")
    def ldV(self, b, st, off):
        self.a(f"""s_mov_b64 exec, s[{sMaskV}:{sMaskV+1}]
        buffer_load_dwordx4 {vr(self.KV0+12*b+4+4*st,4)}, v{self.VV}, s[{rWS}:{rWS+3}], s{sOff} offen offset:{off+1024+512*st} sc1
        s_mov_b64 exec, -1""")

    def attn_loop(self):
        a = self.a
        O0, S0, Q0, KV0 = self.O0, self.S0, self.Q0, self.KV0
        a(f"s_lshl_b32 s{sOff}, s{sKQ}, 15\ns_add_u32 s{sOff}, s{sOff}, {WS_KV}")
        self.ldK(0, 0); self.ldV(0, 0, 0); self.ldV(0, 1, 0); self.ldK(1, 2048); self.ldV(1, 0, 2048)
        a(f"s_mov_b32 s{sCnt}, 8\ns_waitcnt vmcnt(4) lgkmcnt(0)")
        a(f"v_mfma_f32_32x32x16_bf16 {vr(S0,16)}, {vr(KV0,4)}, {vr(Q0,4)}, 0")
        a("s_nop 7\ns_nop 3")
        loop = a.newlabel("attn")
        a(".p2align 6")
        a.label(loop)
        for kb in range(2):
            for t in range(4):
                u = 4 * kb + t
                cur = S0 + 16 * (u & 1); oth = S0 + 16 * (1 - (u & 1))
                pb = kb if t else 1 - kb; pt = (t - 1) & 3
                nb = kb if t < 3 else 1 - kb; nt = (t + 1) & 3
                ex = lambda lo, hi: [a(f"v_exp_f32 v{cur+j}, v{cur+j}") for j in range(lo, hi)]
                ex(0, 2)
                a(f"v_smfmac_f32_32x32x32_bf16 {vr(O0+16*pt,16)}, {vr(KV0+12*pb+8,4)}, {vr(oth+8,8)}, v{self.VIDX}")
                if t == 0: self.ldV(1 - kb, 1, 2048 * (kb + 1) if kb == 0 else 0)
                if t == 3: a("s_waitcnt vmcnt(3)")
                ex(2, 5)
                a(f"v_mfma_f32_32x32x16_bf16 {vr(oth,16)}, {vr(KV0+12*nb,4)}, {vr(Q0+4*nt,4)}, 0")
                if t == 0: a("s_waitcnt vmcnt(4)")
                if t == 2:
                    if kb == 0: a(f"s_add_u32 s{sOff}, s{sOff}, 4096")
                    self.ldK(kb, 2048 * kb)
                ex(5, 11)
                a(f"v_smfmac_f32_32x32x32_bf16 {vr(O0+16*t,16)}, {vr(KV0+12*kb+4,4)}, {vr(cur,8)}, v{self.VIDX}")
                if t == 0: a("s_waitcnt vmcnt(3)")
                if t == 3: self.ldV(kb, 0, 2048 * kb)
                if u == 6: a(f"s_sub_u32 s{sCnt}, s{sCnt}, 1\ns_cmp_lg_u32 s{sCnt}, 0")
                ex(11, 16)
        a(f"s_cbranch_scc1 {loop}")
        a("s_nop 1")
        a(f"v_smfmac_f32_32x32x32_bf16 {vr(O0+48,16)}, {vr(KV0+12+8,4)}, {vr(S0+16+8,8)}, v{self.VIDX}")

    def attn_reduce(self, sc1):
        a = self.a
        O0 = self.O0
        a(f"v_lshlrev_b32 v1, 4, v0\nv_lshlrev_b32 v2, 2, v0")
        A = 72
        for j in (1, 2, 3):
            a(f"""s_add_u32 s{sT0}, s{sKQ}, {j}
            s_and_b32 s{sT0}, s{sT0}, 3
            s_lshl_b32 s{sT1}, s{sTG}, 2
            s_add_u32 s{sT0}, s{sT0}, s{sT1}
            s_mul_i32 s{sT0}, s{sT0}, {3*RED_SLOT}
            v_add_u32 v{A+2*j}, s{sT0}, v1
            v_add_u32 v{A+2*j+1}, s{sT0}, v2""")
        a(f"""s_lshl_b32 s{sT1}, s{sTG}, 2
        s_add_u32 s{sT0}, s{sKQ}, s{sT1}
        s_mul_i32 s{sT0}, s{sT0}, {3*RED_SLOT}
        v_add_u32 v{A}, s{sT0}, v1
        v_add_u32 v{A+1}, s{sT0}, v2
        s_lshl_b32 s{sT1}, s{sTG}, 2
        s_add_u32 s{sT1}, s{sT1}, {CNT}
        v_mov_b32 v3, s{sT1}
        v_mov_b32 v4, 1""")
        for j in (1, 2, 3):
            o = RED + (j - 1) * RED_SLOT
            a(f"""ds_write_b128 v{A+2*j}, {vr(O0+16*j,4)} offset:{o}
            ds_write_b128 v{A+2*j}, {vr(O0+16*j+4,4)} offset:{o+1024}
            ds_write_b32 v{A+2*j+1}, v{O0+16*j+8} offset:{o+2048}""")
        spin = a.newlabel("redspin")
        a(f"""s_waitcnt lgkmcnt(0)
        s_mov_b64 exec, 1
        ds_add_u32 v3, v4
        s_mov_b64 exec, -1""")
        a.label(spin)
        a(f"""ds_read_b32 v5, v3
        s_waitcnt lgkmcnt(0)
        v_readfirstlane_b32 s{sT0}, v5
        s_and_b32 s{sT0}, s{sT0}, 0xff
        s_cmp_lt_u32 s{sT0}, 4
        s_cbranch_scc1 {spin}""")
        R = 24
        for j in range(3):
            o = RED + j * RED_SLOT
            a(f"""ds_read_b128 {vr(R+12*j,4)}, v{A} offset:{o}
            ds_read_b128 {vr(R+12*j+4,4)}, v{A} offset:{o+1024}
            ds_read_b32 v{R+12*j+8}, v{A+1} offset:{o+2048}""")
        a(f"""s_lshl_b32 s{sT0}, s{sTB}, 1
        s_add_u32 s{sT0}, s{sT0}, s{sTG}
        s_lshl_b32 s{sT0}, s{sT0}, 5
        s_lshl_b32 s{sT1}, s{sS}, 2
        s_add_u32 s{sT0}, s{sT0}, s{sT1}
        s_add_u32 s{sT0}, s{sT0}, s{sKQ}
        s_lshl_b32 s{sT0}, s{sT0}, 10
        s_add_u32 s{sT0}, s{sT0}, {WS_O}""")
        for j in range(3):
            a(f"s_waitcnt lgkmcnt({6-3*j})")
            a(f"v_add_f32 v{O0+8}, v{O0+8}, v{R+12*j+8}")
            if j == 2: a(f"v_rcp_f32 v{O0+8}, v{O0+8}")
            for i in range(0, 8, 2):
                a(f"v_pk_add_f32 {vr(O0+i,2)}, {vr(O0+i,2)}, {vr(R+12*j+i,2)}")
        for i in range(0, 8, 2):
            a(f"v_pk_mul_f32 {vr(O0+i,2)}, {vr(O0+i,2)}, {vr(O0+8,2)} op_sel_hi:[1,0]")
        for i in range(4):
            a(f"v_cvt_pk_bf16_f32 v{R+i}, v{O0+2*i}, v{O0+2*i+1}")
        a(f"buffer_store_dwordx4 {vr(R,4)}, v1, s[{rWS}:{rWS+3}], s{sT0} offen{' sc1' if sc1 else ''}")

    def ffn2(self, sc1):
        a = self.a
        ACC, A0, B0, NB = 8, 72, 88, 8
        NS, D = 10, 8
        f = " sc1" if sc1 else ""
        a.vm.reset(); a.lg.reset()
        self.srd(rA, pW2, 1792 * 1024)
        self.srd(rB, pWO, 512 * 1024)
        a(f"""s_mul_i32 s{sRing}, s{sG}, {GR_SZ}
        s_add_u32 s{sRing}, s{sRing}, {GR0}
        s_lshl_b32 s{sT0}, s{sS}, 7
        s_mul_i32 s{sOff}, s{sG}, {28*16*1024}
        s_add_u32 s{sOff}, s{sOff}, s{sT0}
        s_lshl_b32 s{sOff2}, s{sG}, 17
        s_add_u32 s{sOff2}, s{sOff2}, s{sT0}
        s_lshl_b32 s{sT0}, s{sTB}, 1
        s_mul_i32 s{sT1}, s{sT0}, 112
        s_mul_i32 s{sT2}, s{sG}, 28
        s_add_u32 s{sT1}, s{sT1}, s{sT2}
        s_lshl_b32 s{sT1}, s{sT1}, 10
        s_add_u32 s{sK0}, s{sT1}, {WS_H}
        s_add_u32 s{sK0+1}, s{sK0}, {112*1024}
        s_lshl_b32 s{sT0}, s{sT0}, 5
        s_lshl_b32 s{sT2}, s{sG}, 3
        s_add_u32 s{sT0}, s{sT0}, s{sT2}
        s_lshl_b32 s{sT0}, s{sT0}, 10
        s_add_u32 s{sK0+2}, s{sT0}, {WS_O}
        s_add_u32 s{sK0+3}, s{sK0+2}, {32*1024}""")
        self.dma_voff(1, 2, 1024)
        self.tr_addr(2, 3, True, None)
        a(f"v_add_u32 v2, s{sRing}, v2\nv_xor_b32 v3, 64, v2\nv_lshlrev_b32 v4, 4, v0")
        NT = 36
        def dma(st):
            r, so = (rA, sOff) if st < 28 else (rB, sOff2)
            for u in range(2):
                a(f"s_add_u32 m0, s{sRing}, {(st % NS)*2048 + u*1024}")
                if (st not in (0, 28)) or u: a(f"s_add_u32 s{so}, s{so}, 8192")
                else: a("s_nop 0")
                a(f"buffer_load_dwordx4 v1, s[{r}:{r+3}], s{so} offen lds"); a.vm.issue(("w", st))
        def ldb(st):
            B = B0 + 8 * (st % NB)
            for tt in range(2):
                if st < 28:
                    base, k = sK0 + tt, st
                else:
                    base, k = sK0 + 2 + tt, st - 28
                if k and k % 4 == 0: a(f"s_add_u32 s{base}, s{base}, 4096")
                a(f"buffer_load_dwordx4 {vr(B+4*tt,4)}, v4, s[{rWS}:{rWS+3}], s{base} offen offset:{(k%4)*1024}{f}"); a.vm.issue(("b", st))
        def rdlist(st):
            A = A0 + 8 * (st % 2); o = (st % NS) * 2048
            return [f"ds_read_b64_tr_b16 {vr(A+4*ct+2*u,2)}, v{2+ct} offset:{o+1024*u}" for ct in range(2) for u in range(2)]
        for st in range(D):
            dma(st)
            if st < D - 1: ldb(st)
        a.vm.wait(("w", 0))
        for l in rdlist(0): a(l); a.lg.issue(0)
        for st in range(NT):
            tags = [("b", st)] + ([("w", st + 1)] if st + 1 < NT else [])
            a.vm.wait(*tags)
            a.lg.wait(st)
            A = A0 + 8 * (st % 2); B = B0 + 8 * (st % NB)
            rl = rdlist(st + 1) if st + 1 < NT else []
            for n, (ct, tt) in enumerate([(0, 0), (0, 1), (1, 0), (1, 1)]):
                c = ACC + 16 * (2 * ct + tt)
                a(f"v_mfma_f32_32x32x16_bf16 {vr(c,16)}, {vr(A+4*ct,4)}, {vr(B+4*tt,4)}, " + ("0" if st == 0 else vr(c, 16)))
                if n < 2:
                    for l in rl[2*n:2*n+2]: a(l); a.lg.issue(st + 1)
                if n == 2 and st + D < NT: dma(st + D)
                if n == 3 and st + D - 1 < NT: ldb(st + D - 1)
        a(f"""v_and_b32 v1, 31, v0
        v_mul_u32_u24 v1, {FIN_ROW}, v1
        v_lshrrev_b32 v2, 5, v0
        v_lshlrev_b32 v2, 4, v2
        v_add3_u32 v1, v1, v2, s{sRing}
        s_nop 3""")
        for m, (ct, tt) in enumerate([(0, 0), (0, 1), (1, 0), (1, 1)]):
            if m == 3: a("s_nop 0")
            for q in range(4):
                a(f"ds_write_b128 v1, {vr(ACC+16*m+4*q,4)} offset:{tt*32*FIN_ROW + ct*128 + q*32}")
        a("s_waitcnt lgkmcnt(0)")

    def final_pre(self):
        a = self.a
        self.srd(rX, pX, 2048 * 1024)
        self.srd(rA, pB2, 1024)
        self.srd(rB, pOUT, 2048 * 1024)
        a(f"""v_lshrrev_b32 v1, 3, v0
        v_and_b32 v2, 7, v0
        v_lshlrev_b32 v3, 4, v2
        v_lshl_add_u32 v4, v1, 10, v3
        s_lshl_b32 s{sT0}, s{sTB}, 3
        s_add_u32 s{sT0}, s{sT0}, s{sWave}
        s_lshl_b32 s{sT0}, s{sT0}, 13
        s_lshl_b32 s{sT1}, s{sS}, 7
        s_add_u32 s{sOff}, s{sT0}, s{sT1}
        buffer_load_dwordx4 v[8:11], v4, s[{rX}:{rX+3}], s{sOff} offen
        buffer_load_dwordx4 v[12:15], v3, s[{rA}:{rA+3}], s{sT1} offen
        s_mul_i32 s{sT0}, s{sWave}, {8*FIN_ROW}
        v_mul_u32_u24 v5, {FIN_ROW}, v1
        v_lshl_add_u32 v5, v2, 5, v5
        v_add_u32 v5, s{sT0}, v5
        v_add_u32 v5, {GR0}, v5
        s_waitcnt vmcnt(0)""")
        for i in range(4):
            a(f"""v_lshlrev_b32 v{16+2*i}, 16, v{8+i}
            v_and_b32 v{17+2*i}, 0xffff0000, v{8+i}
            v_lshlrev_b32 v{24+2*i}, 16, v{12+i}
            v_and_b32 v{25+2*i}, 0xffff0000, v{12+i}""")
        for i in range(4): a(f"v_pk_add_f32 {vr(16+2*i,2)}, {vr(16+2*i,2)}, {vr(24+2*i,2)}")

    def final_post(self):
        a = self.a
        for g in range(4):
            a(f"ds_read_b128 {vr(32+8*g,4)}, v5 offset:{g*GR_SZ}\nds_read_b128 {vr(36+8*g,4)}, v5 offset:{g*GR_SZ+16}")
        for g in range(4):
            a(f"s_waitcnt lgkmcnt({6-2*g})")
            for i in range(4): a(f"v_pk_add_f32 {vr(16+2*i,2)}, {vr(16+2*i,2)}, {vr(32+8*g+2*i,2)}")
        for i in range(4): a(f"v_cvt_pk_bf16_f32 v{8+i}, v{16+2*i}, v{17+2*i}")
        a(f"buffer_store_dwordx4 v[8:11], v4, s[{rB}:{rB+3}], s{sOff} offen")

    def kernel_begin(self, name):
        a = self.a
        a.vm.reset(); a.lg.reset()
        a(f".globl {name}\n.p2align 8\n.type {name},@function")
        a.label(name)
    def to_G(self, lab):
        self.a(f"s_cmp_ge_u32 s{sWave}, 8\ns_cbranch_scc1 {lab}")

    def k1(self, name):
        a = self.a
        self.kernel_begin(name)
        end, G, kv = name + "_end", name + "_G", name + "_kv"
        self.prologue(end); self.to_G(G)
        self.ln_load(); self.ln_compute()
        a("s_barrier")
        a(f"s_cmp_ge_u32 s{sWave}, 4\ns_cbranch_scc1 {kv}")
        self.q_job(True)
        a(f"s_barrier\ns_branch {end}")
        a.label(kv)
        skip = a.newlabel("nokv")
        a(f"s_cmp_lg_u32 s{sWave}, 4\ns_cbranch_scc1 {skip}")
        self.kv_job(False)
        a.label(skip)
        a(f"s_barrier\ns_branch {end}")
        a.label(G)
        a(f"s_sub_u32 s{sG}, s{sWave}, 8")
        a.vm.reset()
        self.stage_qk()
        a.vm.wait_all()
        a("s_barrier\ns_barrier")
        self.ffn1(False)
        a.label(end); a("s_endpgm")

    def k2(self, name):
        a = self.a
        self.kernel_begin(name)
        end = name + "_end"
        self.prologue(end); self.to_G(end)
        a(f"v_mov_b32 v1, 0\nv_lshlrev_b32 v2, 2, v0\nv_and_b32 v2, 63, v2\nv_add_u32 v2, {CNT}, v2\nds_write_b32 v2, v1\ns_waitcnt lgkmcnt(0)\ns_barrier")
        self.attn_setup(); self.q_from_ws(); self.attn_loop(); self.attn_reduce(False)
        a.label(end); a("s_endpgm")

    def k3(self, name):
        a = self.a
        self.kernel_begin(name)
        end, G = name + "_end", name + "_G"
        self.prologue(end); self.to_G(G)
        self.final_pre()
        a("s_barrier")
        self.final_post()
        a(f"s_branch {end}")
        a.label(G)
        a(f"s_sub_u32 s{sG}, s{sWave}, 8")
        self.ffn2(False)
        a("s_barrier")
        a.label(end); a("s_endpgm")

GC1 = -2.0 * math.sqrt(2.0 / math.pi) * LOG2E
GC2 = GC1 * 0.044715

def descriptor(name):
    return f""".amdhsa_kernel {name}
  .amdhsa_next_free_vgpr {NV}
  .amdhsa_next_free_sgpr 96
  .amdhsa_accum_offset {NV}
  .amdhsa_group_segment_fixed_size 0
  .amdhsa_kernarg_size 104
  .amdhsa_user_sgpr_count 2
  .amdhsa_user_sgpr_kernarg_segment_ptr 1
  .amdhsa_system_sgpr_workgroup_id_x 1
.end_amdhsa_kernel
"""

def build(mode="split", order=None, mimic=True):
    g = Gen(mimic=mimic)
    a = g.a
    if mode == "split":
        ks = {"k1_kernel": g.k1, "k2_kernel": g.k2, "k3_kernel": g.k3}
        order = order or list(ks)
        head = "".join(f"; @launch kernel={k} grid=(256,1,1) block=(768,1,1) lds={LDS_BYTES}\n" for k in order)
    head += '.amdgcn_target "amdgcn-amd-amdhsa--gfx950"\n.text\n'
    for k, fn in ks.items(): fn(k)
    probs = lint(a.lines)
    for p in probs: print("LINT:", p, file=sys.stderr)
    tail = '.section .rodata,"a"\n' + "".join(".p2align 6\n" + descriptor(k) for k in ks)
    return head + a.text() + tail

if __name__ == "__main__":
    out = sys.argv[1] if len(sys.argv) > 1 else "out.s"
    open(out, "w").write(build())
    print("wrote", out)
```

```python
import sys, math, struct
from asmlib import *

NAME = "parallel_sum__grouped_kv_mqa__dense_activation_gelu__prompt"
def f2u(x): return struct.unpack("<I", struct.pack("<f", x))[0]
LOG2E = 1.4426950408889634

XN, XN_T, XN_KS, XN_H = 0, 33792, 1056, 528
WQ = 67584
WK = WQ + 65536
RS = WK + 16384
QX = RS + 256
CNT = QX + 8192
LDS_BYTES = CNT + 128
GR0, GR_SZ = WQ, 20480
RED, RED_SLOT = 0, 2304
FIN_ROW = 272
WS_KV = 0
WS_Q = 0x100000
WS_O = 0x300000
WS_H = 0x500000
WS_FLAG = 0xD00000
WS_BYTES = 0x1000000
pX, pWQ, pWK, pWV, pWO, pBX, pW1, pB1, pW2, pB2, pOUT, pDBG, pWS = range(16, 42, 2)
sWave, sS, sTB, sT0, sT1, sT2, sT3 = 3, 4, 5, 6, 7, 8, 9
sKQ, sTG, sG = 10, 11, 10
sOff, sOff2, sRing, sCnt = 12, 13, 14, 15
rX, rWS, rA, rB, rC = 44, 48, 52, 56, 60
sK0 = 64
sMaskV = 72
NV = 168

class Gen:
    def __init__(self, mimic=True, stamps=False):
        self.a = Asm()
        self.stamps = stamps
        self.mimic = mimic

    def stamp(self, i):
        if not self.stamps: return
        a = self.a
        a(f"""s_memrealtime s[90:91]
        s_mul_i32 s92, s2, 12
        s_add_u32 s92, s92, s{sWave}
        s_lshl_b32 s92, s92, 6
        s_add_u32 s92, s92, {0xE00000 + 4*i}
        s_waitcnt lgkmcnt(0)
        v_mov_b32 v167, s90
        s_mov_b64 s[94:95], exec
        s_mov_b64 exec, 1
        buffer_store_dword v167, off, s[{rWS}:{rWS+3}], s92
        s_mov_b64 exec, s[94:95]""")
        a.vm.issue("stamp"); a.lg.reset()

    def srd(self, r, ptr, nbytes):
        a = self.a
        a(f"s_mov_b32 s{r}, s{ptr}\ns_mov_b32 s{r+1}, s{ptr+1}\ns_mov_b32 s{r+2}, {nbytes:#x}\ns_mov_b32 s{r+3}, 0x20000")

    def prologue(self, end):
        a = self.a
        a(f"""s_cmp_ge_u32 s2, 256
        s_cbranch_scc1 {end}
        s_load_dwordx16 s[16:31], s[0:1], 0
        s_load_dwordx8 s[32:39], s[0:1], 64
        s_load_dwordx2 s[40:41], s[0:1], 96
        v_lshrrev_b32 v1, 6, v0
        v_and_b32 v0, 63, v0
        v_readfirstlane_b32 s{sWave}, v1
        s_lshr_b32 s{sT0}, s2, 3
        s_and_b32 s{sS}, s{sT0}, 7
        s_lshr_b32 s{sT0}, s{sT0}, 3
        s_and_b32 s{sTB}, s2, 7
        s_lshl_b32 s{sTB}, s{sTB}, 2
        s_add_u32 s{sTB}, s{sTB}, s{sT0}
        s_waitcnt lgkmcnt(0)""")
        self.srd(rWS, pWS, WS_BYTES)

    def red8(self, v):
        a = self.a
        for m in ("quad_perm:[1,0,3,2]", "quad_perm:[2,3,0,1]", "row_half_mirror"):
            a("s_nop 1")
            a(f"v_add_f32_dpp v{v}, v{v}, v{v} {m} row_mask:0xf bank_mask:0xf")

    def rnd_bf16(self, v):
        a = self.a
        a(f"v_cvt_pk_bf16_f32 v{v}, v{v}, v{v}\nv_lshlrev_b32 v{v}, 16, v{v}")

    def ln_load(self):
        a = self.a
        X = 8
        self.srd(rX, pX, 2048 * 1024)
        a(f"""v_lshrrev_b32 v1, 3, v0
        v_and_b32 v2, 7, v0
        v_lshlrev_b32 v3, 10, v1
        v_lshl_add_u32 v3, v2, 4, v3
        s_lshl_b32 s{sT0}, s{sTB}, 3
        s_add_u32 s{sT0}, s{sT0}, s{sWave}
        s_lshl_b32 s{sT0}, s{sT0}, 13""")
        for i in range(8):
            a(f"buffer_load_dwordx4 {vr(X+4*i,4)}, v3, s[{rX}:{rX+3}], s{sT0} offen offset:{128*i}")
            a.vm.issue(("x", i))

    def ln_compute(self):
        a = self.a
        X, T = 8, 40
        a(f"""s_mov_b32 s{sK0}, 0x3f803f80
        s_mov_b32 s{sK0+1}, 0x00003f80
        s_mov_b32 s{sK0+2}, 0x3f800000
        s_lshr_b32 s{sT1}, s{sWave}, 2
        s_mul_i32 s{sT1}, s{sT1}, {XN_T}
        s_and_b32 s{sT2}, s{sWave}, 3
        s_lshl_b32 s{sT2}, s{sT2}, 7
        s_add_u32 s{sT1}, s{sT1}, s{sT2}
        v_lshrrev_b32 v4, 1, v2
        v_mul_u32_u24 v4, {XN_KS}, v4
        v_and_b32 v5, 1, v2
        v_mul_u32_u24 v5, {XN_H}, v5
        v_add3_u32 v4, v4, v5, s{sT1}
        v_lshl_add_u32 v4, v1, 4, v4
        s_lshl_b32 s{sT2}, s{sWave}, 5
        s_add_u32 s{sT2}, s{sT2}, {RS}
        v_lshl_add_u32 v5, v1, 2, s{sT2}""")
        for i in range(32):
            if i % 4 == 0: a.vm.wait(("x", i // 4))
            acc = 6 + (i & 1)
            a(f"v_dot2_f32_bf16 v{acc}, v{X+i}, s{sK0}, " + ("0" if i < 2 else f"v{acc}"))
        a("s_nop 2\nv_add_f32 v6, v6, v7")
        self.red8(6)
        a(f"v_mul_f32 v6, {f2u(-1.0/512):#x}, v6")
        if self.mimic: self.rnd_bf16(6)
        def cvt(i):
            t = T + 2 * (i % 4)
            a(f"v_cvt_pk_bf16_f32 v{X+i}, v{t}, v{t+1}")
            if i % 4 == 3:
                k = i // 4
                a(f"ds_write_b128 v4, {vr(X+4*k,4)} offset:{XN + k*4*XN_KS}")
        for i in range(32):
            t = T + 2 * (i % 4)
            a(f"v_dot2_f32_bf16 v{t}, v{X+i}, s{sK0+1}, v6\nv_dot2_f32_bf16 v{t+1}, v{X+i}, s{sK0+2}, v6")
            if i >= 2: cvt(i - 2)
        a("s_nop 0"); cvt(30); cvt(31)
        a("s_nop 0")
        for i in range(32):
            acc = 6 + (i & 1)
            a(f"v_dot2_f32_bf16 v{acc}, v{X+i}, v{X+i}, " + ("0" if i < 2 else f"v{acc}"))
        a("s_nop 2\nv_add_f32 v6, v6, v7")
        self.red8(6)
        if self.mimic:
            a(f"v_mul_f32 v6, {f2u(1.0/512):#x}, v6")
            self.rnd_bf16(6)
            a(f"v_add_f32 v6, {f2u(1e-5):#x}, v6")
            self.rnd_bf16(6)
            a("v_sqrt_f32 v6, v6\ns_nop 0")
            self.rnd_bf16(6)
            a("v_rcp_f32 v6, v6")
        else:
            a(f"v_mov_b32 v7, {f2u(1e-5):#x}\nv_fmac_f32 v7, {f2u(1.0/512):#x}, v6\nv_rsq_f32 v6, v7")
        a("s_nop 0\nds_write_b32 v5, v6\ns_waitcnt lgkmcnt(0)")

    def dma_voff(self, v, t, stride):
        self.a(f"""v_lshrrev_b32 v{v}, 3, v0
        v_and_b32 v{t}, 2, v{v}
        v_lshlrev_b32 v{t}, 1, v{t}
        v_xor_b32 v{t}, v{t}, v0
        v_and_b32 v{t}, 7, v{t}
        v_mul_u32_u24 v{v}, {stride}, v{v}
        v_lshl_add_u32 v{v}, v{t}, 4, v{v}""")

    def tr_addr(self, v, t, perm, sbase, sct=None):
        a = self.a
        a(f"""v_lshrrev_b32 v{v}, 5, v0
        v_lshlrev_b32 v{v}, {9 if perm else 10}, v{v}
        v_bfe_u32 v{t}, v0, 2, 2
        v_lshl_add_u32 v{v}, v{t}, 7, v{v}
        v_lshrrev_b32 v{t}, 1, v{t}
        v_lshl_add_u32 v{v}, v{t}, 6, v{v}
        v_bfe_u32 v{t}, v0, 4, 1
        v_lshl_add_u32 v{v}, v{t}, 5, v{v}
        v_and_b32 v{t}, 3, v0
        v_lshl_add_u32 v{v}, v{t}, 3, v{v}""")
        if sct is not None: a(f"v_xor_b32 v{v}, s{sct}, v{v}")
        return (v, sbase)

    def xn_addr(self, v, t):
        self.a(f"""v_lshrrev_b32 v{t}, 5, v0
        v_mul_u32_u24 v{t}, {XN_H}, v{t}
        v_and_b32 v{v}, 31, v0
        v_lshl_add_u32 v{v}, v{v}, 4, v{t}""")

    def stage_qk(self):
        a = self.a
        self.srd(rA, pWQ, 512 * 1024)
        a(f"""s_bitcmp1_b32 s{sS}, 0
        s_cselect_b32 s{rB}, s{pWV}, s{pWK}
        s_cselect_b32 s{rB+1}, s{pWV+1}, s{pWK+1}
        s_mov_b32 s{rB+2}, 16384
        s_mov_b32 s{rB+3}, 0x20000
        v_lshlrev_b32 v2, 4, v0
        s_lshl_b32 s{sT0}, s{sG}, 12
        s_add_u32 m0, s{sT0}, {WK}""")
        self.dma_voff(1, 3, 1024)
        for i in range(4):
            a(f"buffer_load_dwordx4 v2, s[{rB}:{rB+3}], s{sT0} offen offset:{1024*i} lds"); a.vm.issue("wk")
        a(f"""s_lshl_b32 s{sT0}, s{sG}, 13
        s_lshl_b32 s{sT1}, s{sS}, 7
        s_add_u32 s{sT0}, s{sT0}, s{sT1}
        s_lshl_b32 s{sT1}, s{sG}, 10""")
        for i in range(16):
            a(f"s_add_u32 m0, s{sT1}, {WQ + 4096*i}")
            if i: a(f"s_add_u32 s{sT0}, s{sT0}, 32768")
            else: a("s_nop 0")
            a(f"buffer_load_dwordx4 v1, s[{rA}:{rA+3}], s{sT0} offen lds"); a.vm.issue("wq")

    def q_job(self, split):
        a = self.a
        ACC, A0, B0, PF = 72, 8, 24, 3
        a(f"""s_lshr_b32 s{sT0}, s{sWave}, 1
        s_lshl_b32 s{sT1}, s{sT0}, 6
        s_and_b32 s{sT2}, s{sWave}, 1
        s_mul_i32 s{sT3}, s{sT2}, {XN_T}""")
        self.tr_addr(1, 2, False, None, sct=sT1)
        a(f"v_add_u32 v1, {WQ}, v1")
        self.xn_addr(3, 2)
        a(f"""v_add_u32 v3, s{sT3}, v3
        v_and_b32 v4, 31, v0
        s_lshl_b32 s{sT3}, s{sT2}, 7
        s_add_u32 s{sT3}, s{sT3}, {RS}
        v_lshl_add_u32 v4, v4, 2, s{sT3}
        ds_read_b32 v5, v4""")
        a.lg.issue("r")
        def rd(ks):
            A = A0 + 4 * (ks % 4); B = B0 + 4 * (ks % 4)
            a(f"ds_read_b64_tr_b16 {vr(A,2)}, v1 offset:{ks*2048}"); a.lg.issue(ks)
            a(f"ds_read_b64_tr_b16 {vr(A+2,2)}, v1 offset:{ks*2048+512}"); a.lg.issue(ks)
            a(f"ds_read_b128 {vr(B,4)}, v3 offset:{XN + ks*XN_KS}"); a.lg.issue(ks)
        for ks in range(PF): rd(ks)
        for ks in range(32):
            a.lg.wait(ks)
            A = A0 + 4 * (ks % 4); B = B0 + 4 * (ks % 4)
            a(f"v_mfma_f32_32x32x16_bf16 {vr(ACC,16)}, {vr(A,4)}, {vr(B,4)}, " + ("0" if ks == 0 else vr(ACC, 16)))
            if ks + PF < 32: rd(ks + PF)
        a(f"v_mul_f32 v5, {f2u(0.25*LOG2E):#x}, v5")
        a(f"""s_lshl_b32 s{sT2}, s{sT2}, 2
        s_lshl_b32 s{sT0}, s{sT0}, 1
        v_lshlrev_b32 v6, 4, v0""")
        if split:
            a(f"""s_lshr_b32 s{sT2}, s{sT2}, 2
            s_lshl_b32 s{sT1}, s{sTB}, 1
            s_add_u32 s{sT1}, s{sT1}, s{sT2}
            s_lshl_b32 s{sT1}, s{sT1}, 5
            s_lshl_b32 s{sT2}, s{sS}, 2
            s_add_u32 s{sT1}, s{sT1}, s{sT2}
            s_add_u32 s{sT1}, s{sT1}, s{sT0}
            s_lshl_b32 s{sT1}, s{sT1}, 10
            s_add_u32 s{sT1}, s{sT1}, {WS_Q}""")
        else:
            a(f"""s_add_u32 s{sT0}, s{sT0}, s{sT2}
            s_lshl_b32 s{sT0}, s{sT0}, 10
            s_add_u32 s{sT0}, s{sT0}, {QX}
            v_add_u32 v6, s{sT0}, v6""")
        a("s_nop 7")
        for i in range(0, 16, 2):
            a(f"v_pk_mul_f32 {vr(ACC+i,2)}, {vr(ACC+i,2)}, v[4:5] op_sel:[0,1] op_sel_hi:[1,1]")
        for i in range(8):
            a(f"v_cvt_pk_bf16_f32 v{8+i}, v{ACC+2*i}, v{ACC+2*i+1}")
        if split:
            a(f"buffer_store_dwordx4 v[8:11], v6, s[{rWS}:{rWS+3}], s{sT1} offen")
            a(f"buffer_store_dwordx4 v[12:15], v6, s[{rWS}:{rWS+3}], s{sT1} offen offset:1024")
        else:
            a(f"ds_write_b128 v6, v[8:11]\nds_write_b128 v6, v[12:15] offset:1024\ns_waitcnt lgkmcnt(0)")
        a.lg.reset()

    def kv_job(self, sc1):
        a = self.a
        ACC, W0, X0, PF = 72, 8, 24, 3
        a(f"""s_lshr_b32 s{sT0}, s{sS}, 2
        s_mul_i32 s{sT0}, s{sT0}, {XN_T}
        s_bfe_u32 s{sT1}, s{sS}, 0x10001
        s_lshl_b32 s{sT2}, s{sT1}, 8
        s_add_u32 s{sT0}, s{sT0}, s{sT2}
        v_lshrrev_b32 v1, 4, v0
        v_and_b32 v2, 15, v0
        v_lshrrev_b32 v3, 1, v1
        v_mul_u32_u24 v3, {XN_KS}, v3
        v_and_b32 v4, 1, v1
        v_mul_u32_u24 v4, {XN_H}, v4
        v_add3_u32 v3, v3, v4, s{sT0}
        v_lshl_add_u32 v3, v2, 4, v3
        v_lshlrev_b32 v4, 8, v1
        v_lshl_add_u32 v4, v2, 3, v4
        v_add_u32 v4, {WK}, v4""")
        lab_v = a.newlabel("kvV"); lab_e = a.newlabel("kvE")
        def loop(isv):
            def rd(kk):
                W = W0 + 4 * (kk % 4); Xr = X0 + 4 * (kk % 4)
                a(f"ds_read_b64_tr_b16 {vr(W,2)}, v4 offset:{kk*1024}"); a.lg.issue(kk)
                a(f"ds_read_b64_tr_b16 {vr(W+2,2)}, v4 offset:{kk*1024+128}"); a.lg.issue(kk)
                a(f"ds_read_b128 {vr(Xr,4)}, v3 offset:{XN + kk*2*XN_KS}"); a.lg.issue(kk)
            for kk in range(PF): rd(kk)
            for kk in range(16):
                a.lg.wait(kk)
                W = W0 + 4 * (kk % 4); Xr = X0 + 4 * (kk % 4)
                A, B = (Xr, W) if isv else (W, Xr)
                a(f"v_mfma_f32_16x16x32_bf16 {vr(ACC,4)}, {vr(A,4)}, {vr(B,4)}, " + ("0" if kk == 0 else vr(ACC, 4)))
                if kk + PF < 16: rd(kk + PF)
        a(f"""s_lshr_b32 s{sT0}, s{sS}, 1
        s_lshl_b32 s{sT2}, s{sT0}, 6
        s_add_u32 s{sT2}, s{sT2}, {RS}
        s_lshr_b32 s{sT0}, s{sS}, 2
        s_lshl_b32 s{sT3}, s{sTB}, 1
        s_add_u32 s{sT3}, s{sT3}, s{sT0}
        s_lshl_b32 s{sT3}, s{sT3}, 11
        s_bitcmp1_b32 s{sS}, 0
        s_cbranch_scc1 {lab_v}""")
        a(f"v_lshl_add_u32 v5, v2, 2, s{sT2}\nds_read_b32 v40, v5"); a.lg.issue("r")
        loop(False)
        a(f"""v_and_b32 v5, 1, v1
        v_lshlrev_b32 v5, 9, v5
        v_lshl_add_u32 v5, v2, 4, v5
        v_lshrrev_b32 v6, 1, v1
        v_lshl_add_u32 v5, v6, 3, v5
        s_lshl_b32 s{sT1}, s{sT1}, 8
        s_add_u32 s{sT3}, s{sT3}, s{sT1}
        v_mov_b32 v41, v40
        v_mov_b32 v42, v40
        v_mov_b32 v43, v40
        s_branch {lab_e}""")
        a.lg.reset()
        a.label(lab_v)
        a(f"v_lshl_add_u32 v5, v1, 4, s{sT2}\nds_read_b128 v[40:43], v5"); a.lg.issue("r")
        loop(True)
        a(f"""v_lshrrev_b32 v5, 1, v1
        v_lshlrev_b32 v5, 8, v5
        v_lshl_add_u32 v5, v2, 4, v5
        v_and_b32 v6, 1, v1
        v_lshl_add_u32 v5, v6, 3, v5
        s_lshl_b32 s{sT1}, s{sT1}, 9
        s_add_u32 s{sT3}, s{sT3}, s{sT1}
        s_add_u32 s{sT3}, s{sT3}, 1024
        s_nop 1""")
        a.lg.reset()
        a.label(lab_e)
        a(f"""v_pk_mul_f32 {vr(ACC,2)}, {vr(ACC,2)}, v[40:41]
        v_pk_mul_f32 {vr(ACC+2,2)}, {vr(ACC+2,2)}, v[42:43]
        v_cvt_pk_bf16_f32 v8, v{ACC}, v{ACC+1}
        v_cvt_pk_bf16_f32 v9, v{ACC+2}, v{ACC+3}
        buffer_store_dwordx2 v[8:9], v5, s[{rWS}:{rWS+3}], s{sT3} offen offset:{WS_KV}{' sc1' if sc1 else ''}""")

    def ffn1(self, sc1):
        a = self.a
        ACC, SET0, NSET = 8, 72, 3
        BRAW, BF, RV, TMP = 120, 136, 152, 72
        NS = 10
        self.srd(rA, pW1, 512 * 3584)
        self.srd(rB, pB1, 3584)
        a(f"""s_and_b32 s{sT0}, s{sS}, 1
        s_add_u32 s{sT1}, s{sG}, s{sT0}
        s_and_b32 s{sT1}, s{sT1}, 3
        s_lshl_b32 s{sT1}, s{sT1}, 7
        s_mul_i32 s{sOff}, s{sS}, 448
        s_add_u32 s{sOff}, s{sOff}, s{sT1}
        s_lshl_b32 s{sT1}, s{sT0}, 6
        s_sub_u32 s{sOff}, s{sOff}, s{sT1}
        s_mov_b32 s{sOff2}, s{sOff}
        s_mul_i32 s{sRing}, s{sG}, {GR_SZ}
        s_add_u32 s{sRing}, s{sRing}, {GR0}
        s_cmp_eq_u32 s{sG}, 3
        s_cselect_b32 s{sT1}, s{sT1}, 0""")
        self.dma_voff(1, 2, 3584)
        self.tr_addr(2, 3, False, None, sct=sT1)
        a(f"v_add_u32 v2, s{sRing}, v2\nv_xor_b32 v3, 64, v2")
        self.xn_addr(4, 5)
        a(f"""v_and_b32 v5, 31, v0
        v_lshlrev_b32 v5, 2, v5
        v_add_u32 v5, {RS}, v5
        v_add_u32 v7, {XN_T}, v4
        v_lshrrev_b32 v6, 5, v0
        v_lshlrev_b32 v6, 3, v6
        s_add_u32 s{sOff2}, s{sOff2}, s{sT1}""")
        lab3 = a.newlabel("f1w3"); labe = a.newlabel("f1e")
        a(f"s_cmp_eq_u32 s{sG}, 3\ns_cbranch_scc1 {lab3}")
        def body(nct):
            a.vm.reset(); a.lg.reset()
            def dma(ks):
                for u in range(2):
                    a(f"s_add_u32 m0, s{sRing}, {(ks % NS)*2048 + u*1024}")
                    if ks or u: a(f"s_add_u32 s{sOff}, s{sOff}, {8*3584}")
                    else: a("s_nop 0")
                    a(f"buffer_load_dwordx4 v1, s[{rA}:{rA+3}], s{sOff} offen lds"); a.vm.issue(("w", ks))
            def rdlist(ks):
                A = SET0 + 16 * (ks % NSET); B = A + 8; o = (ks % NS) * 2048
                l = []
                for ct in range(nct):
                    l.append(f"ds_read_b64_tr_b16 {vr(A+4*ct,2)}, v{2+ct} offset:{o}")
                    l.append(f"ds_read_b64_tr_b16 {vr(A+4*ct+2,2)}, v{2+ct} offset:{o+512}")
                for tt in range(2):
                    l.append(f"ds_read_b128 {vr(B+4*tt,4)}, v{4+3*tt} offset:{XN + ks*XN_KS}")
                return l
            for ks in range(NS): dma(ks)
            for ct in range(nct):
                for q in range(4):
                    a(f"buffer_load_dwordx2 {vr(BRAW+8*ct+2*q,2)}, v6, s[{rB}:{rB+3}], s{sOff2} offen offset:{64*ct+16*q}"); a.vm.issue("b1")
            for tt in range(2):
                a(f"ds_read_b32 v{RV+2*tt}, v5 offset:{128*tt}"); a.lg.issue("r")
            for ks in range(2):
                a.vm.wait(("w", ks))
                for l in rdlist(ks): a(l); a.lg.issue(ks)
            for ks in range(32):
                if ks + 2 < 32: a.vm.wait(("w", ks + 2))
                a.lg.wait(ks)
                A = SET0 + 16 * (ks % NSET); B = A + 8
                rl = rdlist(ks + 2) if ks + 2 < 32 else []
                ms = [(ct, tt) for ct in range(nct) for tt in range(2)]
                per = -(-len(rl) // max(1, len(ms) - 1))
                for n, (ct, tt) in enumerate(ms):
                    c = ACC + 16 * (2 * ct + tt)
                    a(f"v_mfma_f32_32x32x16_bf16 {vr(c,16)}, {vr(A+4*ct,4)}, {vr(B+4*tt,4)}, " + ("0" if ks == 0 else vr(c, 16)))
                    for l in rl[n*per:(n+1)*per]: a(l); a.lg.issue(ks + 2)
                if ks + NS < 32: dma(ks + NS)
            a(f"""s_mov_b32 s{sK0}, {f2u(GC2):#x}
            s_mov_b32 s{sK0+1}, {f2u(GC2):#x}
            s_mov_b32 s{sK0+2}, 1.0
            s_mov_b32 s{sK0+3}, 1.0
            v_mov_b32 v{RV+4}, {f2u(GC1):#x}
            v_mov_b32 v{RV+5}, {f2u(GC1):#x}
            v_lshlrev_b32 v1, 4, v0
            s_lshl_b32 s{sT0}, s{sTB}, 1
            s_mul_i32 s{sT0}, s{sT0}, 112
            s_lshr_b32 s{sT1}, s{sOff2}, 5
            s_add_u32 s{sT0}, s{sT0}, s{sT1}
            s_lshl_b32 s{sT0}, s{sT0}, 10
            s_add_u32 s{sT0}, s{sT0}, {WS_H}
            s_add_u32 s{sT1}, s{sT0}, {112*1024}""")
            a.vm.wait("b1")
            for ct in range(nct):
                for q in range(8):
                    a(f"v_lshlrev_b32 v{BF+2*q}, 16, v{BRAW+8*ct+q}\nv_and_b32 v{BF+2*q+1}, 0xffff0000, v{BRAW+8*ct+q}")
                for tt in range(2):
                    c = ACC + 16 * (2 * ct + tt)
                    for half in range(2):
                        seqs = []
                        for p in range(4):
                            x = c + 8 * half + 2 * p; t = TMP + 2 * p; b = BF + 8 * half + 2 * p
                            seqs.append([
                                f"v_pk_fma_f32 {vr(x,2)}, {vr(x,2)}, {vr(RV+2*tt,2)}, {vr(b,2)} op_sel_hi:[1,0,1]",
                                f"v_pk_mul_f32 {vr(t,2)}, {vr(x,2)}, {vr(x,2)}",
                                f"v_pk_fma_f32 {vr(t,2)}, {vr(t,2)}, s[{sK0}:{sK0+1}], {vr(RV+4,2)}",
                                f"v_pk_mul_f32 {vr(t,2)}, {vr(t,2)}, {vr(x,2)}",
                                f"v_exp_f32 v{t}, v{t}", f"v_exp_f32 v{t+1}, v{t+1}",
                                f"v_pk_add_f32 {vr(t,2)}, {vr(t,2)}, s[{sK0+2}:{sK0+3}]",
                                f"v_rcp_f32 v{t}, v{t}", f"v_rcp_f32 v{t+1}, v{t+1}",
                                f"v_pk_mul_f32 {vr(t,2)}, {vr(t,2)}, {vr(x,2)}",
                                f"v_cvt_pk_bf16_f32 v{TMP+8+4*((2*tt+half)%2)+p}, v{t}, v{t+1}"])
                        for k in range(len(seqs[0])):
                            for s in seqs: a(s[k])
                        o = TMP + 8 + 4 * ((2 * tt + half) % 2)
                        a(f"buffer_store_dwordx4 {vr(o,4)}, v1, s[{rWS}:{rWS+3}], s{sT0+tt} offen offset:{(2*ct+half)*1024}{' sc1' if sc1 else ''}")
                        a.vm.issue("h")
        body(2)
        a(f"s_branch {labe}")
        a.label(lab3)
        body(1)
        a.label(labe)
        a.vm.reset(); a.lg.reset()

    O0, S0, Q0, KV0, VIDX, VK, VV = 8, 72, 104, 120, 144, 145, 146
    def attn_setup(self):
        a = self.a
        a(f"""s_and_b32 s{sKQ}, s{sWave}, 3
        s_lshr_b32 s{sTG}, s{sWave}, 2
        v_lshlrev_b32 v{self.VK}, 4, v0
        v_lshrrev_b32 v1, 5, v0
        v_and_b32 v2, 15, v0
        v_lshlrev_b32 v1, 8, v1
        v_lshl_add_u32 v{self.VV}, v2, 4, v1
        v_mov_b32 v{self.VIDX}, 0xdddd
        s_mov_b32 s{sMaskV}, 0x0000ffff
        s_mov_b32 s{sMaskV+1}, 0x0000ffff
        s_mov_b32 s{sMaskV+2}, 0x00110000
        s_mov_b32 s{sMaskV+3}, 0x00110000
        v_mov_b32 v1, 0
        v_mov_b32 v2, 0x3f803f80
        v_cndmask_b32 v1, v1, v2, s[{sMaskV+2}:{sMaskV+3}]""")
        for b in range(2):
            for i in range(4, 12): a(f"v_mov_b32 v{self.KV0+12*b+i}, v1")
        for i in range(64): a(f"v_mov_b32 v{self.O0+i}, 0")
        for i in range(8, 16): a(f"v_mov_b32 v{self.S0+16+i}, 0")

    def q_from_ws(self):
        a = self.a
        a(f"""s_lshl_b32 s{sT0}, s{sTB}, 1
        s_add_u32 s{sT0}, s{sT0}, s{sTG}
        s_lshl_b32 s{sT0}, s{sT0}, 5
        s_lshl_b32 s{sT1}, s{sS}, 2
        s_add_u32 s{sT0}, s{sT0}, s{sT1}""")
        for j in range(4):
            a(f"""s_add_u32 s{sT1}, s{sKQ}, {j}
            s_and_b32 s{sT1}, s{sT1}, 3
            s_add_u32 s{sT1}, s{sT1}, s{sT0}
            s_lshl_b32 s{sT1}, s{sT1}, 10
            s_add_u32 s{sT1}, s{sT1}, {WS_Q}
            buffer_load_dwordx4 {vr(self.Q0+4*j,4)}, v{self.VK}, s[{rWS}:{rWS+3}], s{sT1} offen""")

    def ldK(self, b, off):
        self.a(f"buffer_load_dwordx4 {vr(self.KV0+12*b,4)}, v{self.VK}, s[{rWS}:{rWS+3}], s{sOff} offen offset:{off} sc1")
    def ldV(self, b, st, off):
        self.a(f"""s_mov_b64 exec, s[{sMaskV}:{sMaskV+1}]
        buffer_load_dwordx4 {vr(self.KV0+12*b+4+4*st,4)}, v{self.VV}, s[{rWS}:{rWS+3}], s{sOff} offen offset:{off+1024+512*st} sc1
        s_mov_b64 exec, -1""")

    def attn_loop(self):
        a = self.a
        O0, S0, Q0, KV0 = self.O0, self.S0, self.Q0, self.KV0
        a(f"s_lshl_b32 s{sOff}, s{sKQ}, 15\ns_add_u32 s{sOff}, s{sOff}, {WS_KV}")
        self.ldK(0, 0); self.ldV(0, 0, 0); self.ldV(0, 1, 0); self.ldK(1, 2048); self.ldV(1, 0, 2048)
        a(f"s_mov_b32 s{sCnt}, 8\ns_waitcnt vmcnt(4) lgkmcnt(0)")
        a(f"v_mfma_f32_32x32x16_bf16 {vr(S0,16)}, {vr(KV0,4)}, {vr(Q0,4)}, 0")
        if self.stamps: self.stamp(6); a("s_waitcnt vmcnt(0)")
        a("s_nop 7\ns_nop 3")
        loop = a.newlabel("attn")
        a(".p2align 6")
        a.label(loop)
        for kb in range(2):
            for t in range(4):
                u = 4 * kb + t
                cur = S0 + 16 * (u & 1); oth = S0 + 16 * (1 - (u & 1))
                pb = kb if t else 1 - kb; pt = (t - 1) & 3
                nb = kb if t < 3 else 1 - kb; nt = (t + 1) & 3
                ex = lambda lo, hi: [a(f"v_exp_f32 v{cur+j}, v{cur+j}") for j in range(lo, hi)]
                ex(0, 2)
                a(f"v_smfmac_f32_32x32x32_bf16 {vr(O0+16*pt,16)}, {vr(KV0+12*pb+8,4)}, {vr(oth+8,8)}, v{self.VIDX}")
                if t == 0: self.ldV(1 - kb, 1, 2048 * (kb + 1) if kb == 0 else 0)
                if t == 3: a("s_waitcnt vmcnt(3)")
                ex(2, 5)
                a(f"v_mfma_f32_32x32x16_bf16 {vr(oth,16)}, {vr(KV0+12*nb,4)}, {vr(Q0+4*nt,4)}, 0")
                if t == 0: a("s_waitcnt vmcnt(4)")
                if t == 2:
                    if kb == 0: a(f"s_add_u32 s{sOff}, s{sOff}, 4096")
                    self.ldK(kb, 2048 * kb)
                ex(5, 11)
                a(f"v_smfmac_f32_32x32x32_bf16 {vr(O0+16*t,16)}, {vr(KV0+12*kb+4,4)}, {vr(cur,8)}, v{self.VIDX}")
                if t == 0: a("s_waitcnt vmcnt(3)")
                if t == 3: self.ldV(kb, 0, 2048 * kb)
                if u == 6: a(f"s_sub_u32 s{sCnt}, s{sCnt}, 1\ns_cmp_lg_u32 s{sCnt}, 0")
                ex(11, 16)
        a(f"s_cbranch_scc1 {loop}")
        a("s_nop 1")
        a(f"v_smfmac_f32_32x32x32_bf16 {vr(O0+48,16)}, {vr(KV0+12+8,4)}, {vr(S0+16+8,8)}, v{self.VIDX}")

    def attn_reduce(self, sc1):
        a = self.a
        O0 = self.O0
        a(f"v_lshlrev_b32 v1, 4, v0\nv_lshlrev_b32 v2, 2, v0")
        A = 72
        for j in (1, 2, 3):
            a(f"""s_add_u32 s{sT0}, s{sKQ}, {j}
            s_and_b32 s{sT0}, s{sT0}, 3
            s_lshl_b32 s{sT1}, s{sTG}, 2
            s_add_u32 s{sT0}, s{sT0}, s{sT1}
            s_mul_i32 s{sT0}, s{sT0}, {3*RED_SLOT}
            v_add_u32 v{A+2*j}, s{sT0}, v1
            v_add_u32 v{A+2*j+1}, s{sT0}, v2""")
        a(f"""s_lshl_b32 s{sT1}, s{sTG}, 2
        s_add_u32 s{sT0}, s{sKQ}, s{sT1}
        s_mul_i32 s{sT0}, s{sT0}, {3*RED_SLOT}
        v_add_u32 v{A}, s{sT0}, v1
        v_add_u32 v{A+1}, s{sT0}, v2
        s_lshl_b32 s{sT1}, s{sTG}, 2
        s_add_u32 s{sT1}, s{sT1}, {CNT}
        v_mov_b32 v3, s{sT1}
        v_mov_b32 v4, 1""")
        for j in (1, 2, 3):
            o = RED + (j - 1) * RED_SLOT
            a(f"""ds_write_b128 v{A+2*j}, {vr(O0+16*j,4)} offset:{o}
            ds_write_b128 v{A+2*j}, {vr(O0+16*j+4,4)} offset:{o+1024}
            ds_write_b32 v{A+2*j+1}, v{O0+16*j+8} offset:{o+2048}""")
        spin = a.newlabel("redspin")
        a(f"""s_waitcnt lgkmcnt(0)
        s_mov_b64 exec, 1
        ds_add_u32 v3, v4
        s_mov_b64 exec, -1""")
        a.label(spin)
        a(f"""ds_read_b32 v5, v3
        s_waitcnt lgkmcnt(0)
        v_readfirstlane_b32 s{sT0}, v5
        s_and_b32 s{sT0}, s{sT0}, 0xff
        s_cmp_lt_u32 s{sT0}, 4
        s_cbranch_scc1 {spin}""")
        R = 24
        for j in range(3):
            o = RED + j * RED_SLOT
            a(f"""ds_read_b128 {vr(R+12*j,4)}, v{A} offset:{o}
            ds_read_b128 {vr(R+12*j+4,4)}, v{A} offset:{o+1024}
            ds_read_b32 v{R+12*j+8}, v{A+1} offset:{o+2048}""")
        a(f"""s_lshl_b32 s{sT0}, s{sTB}, 1
        s_add_u32 s{sT0}, s{sT0}, s{sTG}
        s_lshl_b32 s{sT0}, s{sT0}, 5
        s_lshl_b32 s{sT1}, s{sS}, 2
        s_add_u32 s{sT0}, s{sT0}, s{sT1}
        s_add_u32 s{sT0}, s{sT0}, s{sKQ}
        s_lshl_b32 s{sT0}, s{sT0}, 10
        s_add_u32 s{sT0}, s{sT0}, {WS_O}""")
        for j in range(3):
            a(f"s_waitcnt lgkmcnt({6-3*j})")
            a(f"v_add_f32 v{O0+8}, v{O0+8}, v{R+12*j+8}")
            if j == 2: a(f"v_rcp_f32 v{O0+8}, v{O0+8}")
            for i in range(0, 8, 2):
                a(f"v_pk_add_f32 {vr(O0+i,2)}, {vr(O0+i,2)}, {vr(R+12*j+i,2)}")
        for i in range(0, 8, 2):
            a(f"v_pk_mul_f32 {vr(O0+i,2)}, {vr(O0+i,2)}, {vr(O0+8,2)} op_sel_hi:[1,0]")
        for i in range(4):
            a(f"v_cvt_pk_bf16_f32 v{R+i}, v{O0+2*i}, v{O0+2*i+1}")
        a(f"buffer_store_dwordx4 {vr(R,4)}, v1, s[{rWS}:{rWS+3}], s{sT0} offen{' sc1' if sc1 else ''}")

    def ffn2(self, sc1):
        a = self.a
        ACC, A0, B0, NB = 8, 72, 88, 8
        NS, D = 10, 8
        f = " sc1" if sc1 else ""
        a.vm.reset(); a.lg.reset()
        self.srd(rA, pW2, 1792 * 1024)
        self.srd(rB, pWO, 512 * 1024)
        a(f"""s_mul_i32 s{sRing}, s{sG}, {GR_SZ}
        s_add_u32 s{sRing}, s{sRing}, {GR0}
        s_lshl_b32 s{sT0}, s{sS}, 7
        s_mul_i32 s{sOff}, s{sG}, {28*16*1024}
        s_add_u32 s{sOff}, s{sOff}, s{sT0}
        s_lshl_b32 s{sOff2}, s{sG}, 17
        s_add_u32 s{sOff2}, s{sOff2}, s{sT0}
        s_lshl_b32 s{sT0}, s{sTB}, 1
        s_mul_i32 s{sT1}, s{sT0}, 112
        s_mul_i32 s{sT2}, s{sG}, 28
        s_add_u32 s{sT1}, s{sT1}, s{sT2}
        s_lshl_b32 s{sT1}, s{sT1}, 10
        s_add_u32 s{sK0}, s{sT1}, {WS_H}
        s_add_u32 s{sK0+1}, s{sK0}, {112*1024}
        s_lshl_b32 s{sT0}, s{sT0}, 5
        s_lshl_b32 s{sT2}, s{sG}, 3
        s_add_u32 s{sT0}, s{sT0}, s{sT2}
        s_lshl_b32 s{sT0}, s{sT0}, 10
        s_add_u32 s{sK0+2}, s{sT0}, {WS_O}
        s_add_u32 s{sK0+3}, s{sK0+2}, {32*1024}""")
        self.dma_voff(1, 2, 1024)
        self.tr_addr(2, 3, True, None)
        a(f"v_add_u32 v2, s{sRing}, v2\nv_xor_b32 v3, 64, v2\nv_lshlrev_b32 v4, 4, v0")
        NT = 36
        def dma(st):
            r, so = (rA, sOff) if st < 28 else (rB, sOff2)
            for u in range(2):
                a(f"s_add_u32 m0, s{sRing}, {(st % NS)*2048 + u*1024}")
                if (st not in (0, 28)) or u: a(f"s_add_u32 s{so}, s{so}, 8192")
                else: a("s_nop 0")
                a(f"buffer_load_dwordx4 v1, s[{r}:{r+3}], s{so} offen lds"); a.vm.issue(("w", st))
        def ldb(st):
            B = B0 + 8 * (st % NB)
            for tt in range(2):
                if st < 28:
                    base, k = sK0 + tt, st
                else:
                    base, k = sK0 + 2 + tt, st - 28
                if k and k % 4 == 0: a(f"s_add_u32 s{base}, s{base}, 4096")
                a(f"buffer_load_dwordx4 {vr(B+4*tt,4)}, v4, s[{rWS}:{rWS+3}], s{base} offen offset:{(k%4)*1024}{f}"); a.vm.issue(("b", st))
        def rdlist(st):
            A = A0 + 8 * (st % 2); o = (st % NS) * 2048
            return [f"ds_read_b64_tr_b16 {vr(A+4*ct+2*u,2)}, v{2+ct} offset:{o+1024*u}" for ct in range(2) for u in range(2)]
        for st in range(D):
            dma(st)
            if st < D - 1: ldb(st)
        a.vm.wait(("w", 0))
        for l in rdlist(0): a(l); a.lg.issue(0)
        for st in range(NT):
            tags = [("b", st)] + ([("w", st + 1)] if st + 1 < NT else [])
            a.vm.wait(*tags)
            a.lg.wait(st)
            A = A0 + 8 * (st % 2); B = B0 + 8 * (st % NB)
            rl = rdlist(st + 1) if st + 1 < NT else []
            for n, (ct, tt) in enumerate([(0, 0), (0, 1), (1, 0), (1, 1)]):
                c = ACC + 16 * (2 * ct + tt)
                a(f"v_mfma_f32_32x32x16_bf16 {vr(c,16)}, {vr(A+4*ct,4)}, {vr(B+4*tt,4)}, " + ("0" if st == 0 else vr(c, 16)))
                if n < 2:
                    for l in rl[2*n:2*n+2]: a(l); a.lg.issue(st + 1)
                if n == 2 and st + D < NT: dma(st + D)
                if n == 3 and st + D - 1 < NT: ldb(st + D - 1)
        a(f"""v_and_b32 v1, 31, v0
        v_mul_u32_u24 v1, {FIN_ROW}, v1
        v_lshrrev_b32 v2, 5, v0
        v_lshlrev_b32 v2, 4, v2
        v_add3_u32 v1, v1, v2, s{sRing}
        s_nop 3""")
        for m, (ct, tt) in enumerate([(0, 0), (0, 1), (1, 0), (1, 1)]):
            if m == 3: a("s_nop 0")
            for q in range(4):
                a(f"ds_write_b128 v1, {vr(ACC+16*m+4*q,4)} offset:{tt*32*FIN_ROW + ct*128 + q*32}")
        a("s_waitcnt lgkmcnt(0)")

    def final_pre(self):
        a = self.a
        self.srd(rX, pX, 2048 * 1024)
        self.srd(rA, pB2, 1024)
        self.srd(rB, pOUT, 2048 * 1024)
        a(f"""v_lshrrev_b32 v1, 3, v0
        v_and_b32 v2, 7, v0
        v_lshlrev_b32 v3, 4, v2
        v_lshl_add_u32 v4, v1, 10, v3
        s_lshl_b32 s{sT0}, s{sTB}, 3
        s_add_u32 s{sT0}, s{sT0}, s{sWave}
        s_lshl_b32 s{sT0}, s{sT0}, 13
        s_lshl_b32 s{sT1}, s{sS}, 7
        s_add_u32 s{sOff}, s{sT0}, s{sT1}
        buffer_load_dwordx4 v[8:11], v4, s[{rX}:{rX+3}], s{sOff} offen
        buffer_load_dwordx4 v[12:15], v3, s[{rA}:{rA+3}], s{sT1} offen
        s_mul_i32 s{sT0}, s{sWave}, {8*FIN_ROW}
        v_mul_u32_u24 v5, {FIN_ROW}, v1
        v_lshl_add_u32 v5, v2, 5, v5
        v_add_u32 v5, s{sT0}, v5
        v_add_u32 v5, {GR0}, v5
        s_waitcnt vmcnt(0)""")
        for i in range(4):
            a(f"""v_lshlrev_b32 v{16+2*i}, 16, v{8+i}
            v_and_b32 v{17+2*i}, 0xffff0000, v{8+i}
            v_lshlrev_b32 v{24+2*i}, 16, v{12+i}
            v_and_b32 v{25+2*i}, 0xffff0000, v{12+i}""")
        for i in range(4): a(f"v_pk_add_f32 {vr(16+2*i,2)}, {vr(16+2*i,2)}, {vr(24+2*i,2)}")

    def final_post(self):
        a = self.a
        for g in range(4):
            a(f"ds_read_b128 {vr(32+8*g,4)}, v5 offset:{g*GR_SZ}\nds_read_b128 {vr(36+8*g,4)}, v5 offset:{g*GR_SZ+16}")
        for g in range(4):
            a(f"s_waitcnt lgkmcnt({6-2*g})")
            for i in range(4): a(f"v_pk_add_f32 {vr(16+2*i,2)}, {vr(16+2*i,2)}, {vr(32+8*g+2*i,2)}")
        for i in range(4): a(f"v_cvt_pk_bf16_f32 v{8+i}, v{16+2*i}, v{17+2*i}")
        a(f"buffer_store_dwordx4 v[8:11], v4, s[{rB}:{rB+3}], s{sOff} offen")

    def kernel_begin(self, name):
        a = self.a
        a.vm.reset(); a.lg.reset()
        a(f".globl {name}\n.p2align 8\n.type {name},@function")
        a.label(name)
    def to_G(self, lab):
        self.a(f"s_cmp_ge_u32 s{sWave}, 8\ns_cbranch_scc1 {lab}")

    def k1(self, name):
        a = self.a
        self.kernel_begin(name)
        end, G, kv = name + "_end", name + "_G", name + "_kv"
        self.prologue(end); self.to_G(G)
        self.stamp(0); self.ln_load(); self.ln_compute(); self.stamp(1)
        a("s_barrier"); self.stamp(2)
        a(f"s_cmp_ge_u32 s{sWave}, 4\ns_cbranch_scc1 {kv}")
        self.q_job(True); self.stamp(3)
        a(f"s_barrier\ns_branch {end}")
        a.label(kv)
        skip = a.newlabel("nokv")
        a(f"s_cmp_lg_u32 s{sWave}, 4\ns_cbranch_scc1 {skip}")
        self.kv_job(False); self.stamp(3)
        a.label(skip)
        a(f"s_barrier\ns_branch {end}")
        a.label(G)
        a(f"s_sub_u32 s{sG}, s{sWave}, 8")
        a.vm.reset(); self.stamp(0)
        self.stage_qk()
        a.vm.wait_all(); self.stamp(1)
        a("s_barrier\ns_barrier"); self.stamp(2)
        self.ffn1(False); self.stamp(3); a("s_waitcnt vmcnt(0)"); self.stamp(4)
        a.label(end); a("s_endpgm")

    def k0(self, name):
        self.kernel_begin(name); self.a("s_endpgm")

    def k2(self, name):
        a = self.a
        self.kernel_begin(name)
        end = name + "_end"
        self.prologue(end); self.to_G(end)
        a(f"v_mov_b32 v1, 0\nv_lshlrev_b32 v2, 2, v0\nv_and_b32 v2, 63, v2\nv_add_u32 v2, {CNT}, v2\nds_write_b32 v2, v1\ns_waitcnt lgkmcnt(0)\ns_barrier")
        self.stamp(5); self.attn_setup(); self.q_from_ws(); self.attn_loop(); self.stamp(7); self.attn_reduce(False); self.stamp(8)
        a.label(end); a("s_endpgm")

    def k3(self, name):
        a = self.a
        self.kernel_begin(name)
        end, G = name + "_end", name + "_G"
        self.prologue(end); self.to_G(G)
        self.stamp(9); self.final_pre()
        a("s_barrier"); self.stamp(11)
        self.final_post(); self.stamp(12)
        a(f"s_branch {end}")
        a.label(G)
        a(f"s_sub_u32 s{sG}, s{sWave}, 8")
        self.stamp(9); self.ffn2(False); self.stamp(10)
        a("s_barrier")
        a.label(end); a("s_endpgm")

GC1 = -2.0 * math.sqrt(2.0 / math.pi) * LOG2E
GC2 = GC1 * 0.044715

def descriptor(name):
    return f""".amdhsa_kernel {name}
  .amdhsa_next_free_vgpr {NV}
  .amdhsa_next_free_sgpr 96
  .amdhsa_accum_offset {NV}
  .amdhsa_group_segment_fixed_size 0
  .amdhsa_kernarg_size 104
  .amdhsa_user_sgpr_count 2
  .amdhsa_user_sgpr_kernarg_segment_ptr 1
  .amdhsa_system_sgpr_workgroup_id_x 1
.end_amdhsa_kernel
"""

def build(mode="split", order=None, mimic=True, stamps=False):
    g = Gen(mimic=mimic, stamps=stamps)
    a = g.a
    if mode == "split":
        ks = {"k1_kernel": g.k1, "k2_kernel": g.k2, "k3_kernel": g.k3}
        order = order or list(ks)
        if "k0_kernel" in order: ks["k0_kernel"] = g.k0
        head = "".join(f"; @launch kernel={k} grid=(256,1,1) block=(768,1,1) lds={LDS_BYTES}\n" for k in order)
    head += '.amdgcn_target "amdgcn-amd-amdhsa--gfx950"\n.text\n'
    for k, fn in ks.items(): fn(k)
    probs = lint(a.lines)
    for p in probs: print("LINT:", p, file=sys.stderr)
    tail = '.section .rodata,"a"\n' + "".join(".p2align 6\n" + descriptor(k) for k in ks)
    return head + a.text() + tail

if __name__ == "__main__":
    import argparse
    ap = argparse.ArgumentParser()
    ap.add_argument("-o", default="out.s"); ap.add_argument("--mode", default="split")
    ap.add_argument("--stamps", action="store_true"); ap.add_argument("--nomimic", action="store_true")
    ap.add_argument("--order", default=None)
    x = ap.parse_args(); out = x.o
    open(out, "w").write(build(x.mode, x.order.split(",") if x.order else None, not x.nomimic, x.stamps))
    print("wrote", out)
```

```python
import sys, math, struct
from asmlib import *

NAME = "parallel_sum__grouped_kv_mqa__dense_activation_gelu__prompt"
def f2u(x): return struct.unpack("<I", struct.pack("<f", x))[0]
LOG2E = 1.4426950408889634

XN, XN_T, XN_KS, XN_H = 0, 33792, 1056, 528
WQ = 67584
WK = WQ + 65536
RS = WK + 16384
QX = RS + 256
CNT = QX + 8192
LDS_BYTES = CNT + 128
GR0, GR_SZ = WQ, 20480
RED, RED_SLOT = 0, 2304
FIN_ROW = 272
WS_KV = 0
WS_Q = 0x100000
WS_O = 0x300000
WS_H = 0x500000
WS_FLAG = 0xD00000
WS_BYTES = 0x1000000
pX, pWQ, pWK, pWV, pWO, pBX, pW1, pB1, pW2, pB2, pOUT, pDBG, pWS = range(16, 42, 2)
sWave, sS, sTB, sT0, sT1, sT2, sT3 = 3, 4, 5, 6, 7, 8, 9
sKQ, sTG, sG = 10, 11, 10
sOff, sOff2, sRing, sCnt = 12, 13, 14, 15
rX, rWS, rA, rB, rC = 44, 48, 52, 56, 60
sK0 = 64
sMaskV = 72
NV = 168

class Gen:
    def __init__(self, mimic=True, stamps=False):
        self.a = Asm()
        self.stamps = stamps
        self.mimic = mimic

    def stamp(self, i):
        if not self.stamps: return
        a = self.a
        a(f"""s_memrealtime s[90:91]
        s_mul_i32 s92, s2, 12
        s_add_u32 s92, s92, s{sWave}
        s_lshl_b32 s92, s92, 6
        s_add_u32 s92, s92, {0xE00000 + 4*i}
        s_waitcnt lgkmcnt(0)
        v_mov_b32 v167, s90
        s_mov_b64 s[94:95], exec
        s_mov_b64 exec, 1
        buffer_store_dword v167, off, s[{rWS}:{rWS+3}], s92
        s_mov_b64 exec, s[94:95]""")
        a.vm.issue("stamp"); a.lg.reset()

    def srd(self, r, ptr, nbytes):
        a = self.a
        a(f"s_mov_b32 s{r}, s{ptr}\ns_mov_b32 s{r+1}, s{ptr+1}\ns_mov_b32 s{r+2}, {nbytes:#x}\ns_mov_b32 s{r+3}, 0x20000")

    def prologue(self, end):
        a = self.a
        a(f"""s_cmp_ge_u32 s2, 256
        s_cbranch_scc1 {end}
        s_load_dwordx16 s[16:31], s[0:1], 0
        s_load_dwordx8 s[32:39], s[0:1], 64
        s_load_dwordx2 s[40:41], s[0:1], 96
        v_lshrrev_b32 v1, 6, v0
        v_and_b32 v0, 63, v0
        v_readfirstlane_b32 s{sWave}, v1
        s_lshr_b32 s{sT0}, s2, 3
        s_and_b32 s{sS}, s{sT0}, 7
        s_lshr_b32 s{sT0}, s{sT0}, 3
        s_and_b32 s{sTB}, s2, 7
        s_lshl_b32 s{sTB}, s{sTB}, 2
        s_add_u32 s{sTB}, s{sTB}, s{sT0}
        s_waitcnt lgkmcnt(0)""")
        self.srd(rWS, pWS, WS_BYTES)

    def red8(self, v):
        a = self.a
        for m in ("quad_perm:[1,0,3,2]", "quad_perm:[2,3,0,1]", "row_half_mirror"):
            a("s_nop 1")
            a(f"v_add_f32_dpp v{v}, v{v}, v{v} {m} row_mask:0xf bank_mask:0xf")

    def rnd_bf16(self, v):
        a = self.a
        a(f"v_cvt_pk_bf16_f32 v{v}, v{v}, v{v}\nv_lshlrev_b32 v{v}, 16, v{v}")

    def ln_load(self):
        a = self.a
        X = 8
        self.srd(rX, pX, 2048 * 1024)
        a(f"""v_lshrrev_b32 v1, 3, v0
        v_and_b32 v2, 7, v0
        v_lshlrev_b32 v3, 10, v1
        v_lshl_add_u32 v3, v2, 4, v3
        s_lshl_b32 s{sT0}, s{sTB}, 3
        s_add_u32 s{sT0}, s{sT0}, s{sWave}
        s_lshl_b32 s{sT0}, s{sT0}, 13""")
        for i in range(8):
            a(f"buffer_load_dwordx4 {vr(X+4*i,4)}, v3, s[{rX}:{rX+3}], s{sT0} offen offset:{128*i}")
            a.vm.issue(("x", i))

    def ln_compute(self):
        a = self.a
        X, T = 8, 40
        a(f"""s_mov_b32 s{sK0}, 0x3f803f80
        s_mov_b32 s{sK0+1}, 0x00003f80
        s_mov_b32 s{sK0+2}, 0x3f800000
        s_lshr_b32 s{sT1}, s{sWave}, 2
        s_mul_i32 s{sT1}, s{sT1}, {XN_T}
        s_and_b32 s{sT2}, s{sWave}, 3
        s_lshl_b32 s{sT2}, s{sT2}, 7
        s_add_u32 s{sT1}, s{sT1}, s{sT2}
        v_lshrrev_b32 v4, 1, v2
        v_mul_u32_u24 v4, {XN_KS}, v4
        v_and_b32 v5, 1, v2
        v_mul_u32_u24 v5, {XN_H}, v5
        v_add3_u32 v4, v4, v5, s{sT1}
        v_lshl_add_u32 v4, v1, 4, v4
        s_lshl_b32 s{sT2}, s{sWave}, 5
        s_add_u32 s{sT2}, s{sT2}, {RS}
        v_lshl_add_u32 v5, v1, 2, s{sT2}""")
        for i in range(32):
            if i % 4 == 0: a.vm.wait(("x", i // 4))
            acc = 6 + (i & 1)
            a(f"v_dot2_f32_bf16 v{acc}, v{X+i}, s{sK0}, " + ("0" if i < 2 else f"v{acc}"))
        a("s_nop 2\nv_add_f32 v6, v6, v7")
        self.red8(6)
        a(f"v_mul_f32 v6, {f2u(-1.0/512):#x}, v6")
        if self.mimic: self.rnd_bf16(6)
        def cvt(i):
            t = T + 2 * (i % 4)
            a(f"v_cvt_pk_bf16_f32 v{X+i}, v{t}, v{t+1}")
            if i % 4 == 3:
                k = i // 4
                a(f"ds_write_b128 v4, {vr(X+4*k,4)} offset:{XN + k*4*XN_KS}")
        for i in range(32):
            t = T + 2 * (i % 4)
            a(f"v_dot2_f32_bf16 v{t}, v{X+i}, s{sK0+1}, v6\nv_dot2_f32_bf16 v{t+1}, v{X+i}, s{sK0+2}, v6")
            if i >= 2: cvt(i - 2)
        a("s_nop 0"); cvt(30); cvt(31)
        a("s_nop 0")
        for i in range(32):
            acc = 6 + (i & 1)
            a(f"v_dot2_f32_bf16 v{acc}, v{X+i}, v{X+i}, " + ("0" if i < 2 else f"v{acc}"))
        a("s_nop 2\nv_add_f32 v6, v6, v7")
        self.red8(6)
        if self.mimic:
            a(f"v_mul_f32 v6, {f2u(1.0/512):#x}, v6")
            self.rnd_bf16(6)
            a(f"v_add_f32 v6, {f2u(1e-5):#x}, v6")
            self.rnd_bf16(6)
            a("v_sqrt_f32 v6, v6\ns_nop 0")
            self.rnd_bf16(6)
            a("v_rcp_f32 v6, v6")
        else:
            a(f"v_mov_b32 v7, {f2u(1e-5):#x}\nv_fmac_f32 v7, {f2u(1.0/512):#x}, v6\nv_rsq_f32 v6, v7")
        a("s_nop 0\nds_write_b32 v5, v6\ns_waitcnt lgkmcnt(0)")

    def dma_voff(self, v, t, stride):
        self.a(f"""v_lshrrev_b32 v{v}, 3, v0
        v_and_b32 v{t}, 2, v{v}
        v_lshlrev_b32 v{t}, 1, v{t}
        v_xor_b32 v{t}, v{t}, v0
        v_and_b32 v{t}, 7, v{t}
        v_mul_u32_u24 v{v}, {stride}, v{v}
        v_lshl_add_u32 v{v}, v{t}, 4, v{v}""")

    def tr_addr(self, v, t, perm, sbase, sct=None):
        a = self.a
        a(f"""v_lshrrev_b32 v{v}, 5, v0
        v_lshlrev_b32 v{v}, {9 if perm else 10}, v{v}
        v_bfe_u32 v{t}, v0, 2, 2
        v_lshl_add_u32 v{v}, v{t}, 7, v{v}
        v_lshrrev_b32 v{t}, 1, v{t}
        v_lshl_add_u32 v{v}, v{t}, 6, v{v}
        v_bfe_u32 v{t}, v0, 4, 1
        v_lshl_add_u32 v{v}, v{t}, 5, v{v}
        v_and_b32 v{t}, 3, v0
        v_lshl_add_u32 v{v}, v{t}, 3, v{v}""")
        if sct is not None: a(f"v_xor_b32 v{v}, s{sct}, v{v}")
        return (v, sbase)

    def xn_addr(self, v, t):
        self.a(f"""v_lshrrev_b32 v{t}, 5, v0
        v_mul_u32_u24 v{t}, {XN_H}, v{t}
        v_and_b32 v{v}, 31, v0
        v_lshl_add_u32 v{v}, v{v}, 4, v{t}""")

    def stage_qk(self):
        a = self.a
        self.srd(rA, pWQ, 512 * 1024)
        a(f"""s_bitcmp1_b32 s{sS}, 0
        s_cselect_b32 s{rB}, s{pWV}, s{pWK}
        s_cselect_b32 s{rB+1}, s{pWV+1}, s{pWK+1}
        s_mov_b32 s{rB+2}, 16384
        s_mov_b32 s{rB+3}, 0x20000
        v_lshlrev_b32 v2, 4, v0
        s_lshl_b32 s{sT0}, s{sG}, 12
        s_add_u32 m0, s{sT0}, {WK}""")
        self.dma_voff(1, 3, 1024)
        for i in range(4):
            a(f"buffer_load_dwordx4 v2, s[{rB}:{rB+3}], s{sT0} offen offset:{1024*i} lds"); a.vm.issue("wk")
        a(f"""s_lshl_b32 s{sT0}, s{sG}, 13
        s_lshl_b32 s{sT1}, s{sS}, 7
        s_add_u32 s{sT0}, s{sT0}, s{sT1}
        s_lshl_b32 s{sT1}, s{sG}, 10""")
        for i in range(16):
            a(f"s_add_u32 m0, s{sT1}, {WQ + 4096*i}")
            if i: a(f"s_add_u32 s{sT0}, s{sT0}, 32768")
            else: a("s_nop 0")
            a(f"buffer_load_dwordx4 v1, s[{rA}:{rA+3}], s{sT0} offen lds"); a.vm.issue("wq")

    def q_job(self, split):
        a = self.a
        ACC, A0, B0, PF = 72, 8, 24, 3
        a(f"""s_lshr_b32 s{sT0}, s{sWave}, 1
        s_lshl_b32 s{sT1}, s{sT0}, 6
        s_and_b32 s{sT2}, s{sWave}, 1
        s_mul_i32 s{sT3}, s{sT2}, {XN_T}""")
        self.tr_addr(1, 2, False, None, sct=sT1)
        a(f"v_add_u32 v1, {WQ}, v1")
        self.xn_addr(3, 2)
        a(f"""v_add_u32 v3, s{sT3}, v3
        v_and_b32 v4, 31, v0
        s_lshl_b32 s{sT3}, s{sT2}, 7
        s_add_u32 s{sT3}, s{sT3}, {RS}
        v_lshl_add_u32 v4, v4, 2, s{sT3}
        ds_read_b32 v5, v4""")
        a.lg.issue("r")
        def rd(ks):
            A = A0 + 4 * (ks % 4); B = B0 + 4 * (ks % 4)
            a(f"ds_read_b64_tr_b16 {vr(A,2)}, v1 offset:{ks*2048}"); a.lg.issue(ks)
            a(f"ds_read_b64_tr_b16 {vr(A+2,2)}, v1 offset:{ks*2048+512}"); a.lg.issue(ks)
            a(f"ds_read_b128 {vr(B,4)}, v3 offset:{XN + ks*XN_KS}"); a.lg.issue(ks)
        for ks in range(PF): rd(ks)
        for ks in range(32):
            a.lg.wait(ks)
            A = A0 + 4 * (ks % 4); B = B0 + 4 * (ks % 4)
            a(f"v_mfma_f32_32x32x16_bf16 {vr(ACC,16)}, {vr(A,4)}, {vr(B,4)}, " + ("0" if ks == 0 else vr(ACC, 16)))
            if ks + PF < 32: rd(ks + PF)
        a(f"v_mul_f32 v5, {f2u(0.25*LOG2E):#x}, v5")
        a(f"""s_lshl_b32 s{sT2}, s{sT2}, 2
        s_lshl_b32 s{sT0}, s{sT0}, 1
        v_lshlrev_b32 v6, 4, v0""")
        if split:
            a(f"""s_lshr_b32 s{sT2}, s{sT2}, 2
            s_lshl_b32 s{sT1}, s{sTB}, 1
            s_add_u32 s{sT1}, s{sT1}, s{sT2}
            s_lshl_b32 s{sT1}, s{sT1}, 5
            s_lshl_b32 s{sT2}, s{sS}, 2
            s_add_u32 s{sT1}, s{sT1}, s{sT2}
            s_add_u32 s{sT1}, s{sT1}, s{sT0}
            s_lshl_b32 s{sT1}, s{sT1}, 10
            s_add_u32 s{sT1}, s{sT1}, {WS_Q}""")
        else:
            a(f"""s_add_u32 s{sT0}, s{sT0}, s{sT2}
            s_lshl_b32 s{sT0}, s{sT0}, 10
            s_add_u32 s{sT0}, s{sT0}, {QX}
            v_add_u32 v6, s{sT0}, v6""")
        a("s_nop 7")
        for i in range(0, 16, 2):
            a(f"v_pk_mul_f32 {vr(ACC+i,2)}, {vr(ACC+i,2)}, v[4:5] op_sel:[0,1] op_sel_hi:[1,1]")
        for i in range(8):
            a(f"v_cvt_pk_bf16_f32 v{8+i}, v{ACC+2*i}, v{ACC+2*i+1}")
        if split:
            a(f"buffer_store_dwordx4 v[8:11], v6, s[{rWS}:{rWS+3}], s{sT1} offen")
            a(f"buffer_store_dwordx4 v[12:15], v6, s[{rWS}:{rWS+3}], s{sT1} offen offset:1024")
        else:
            a(f"ds_write_b128 v6, v[8:11]\nds_write_b128 v6, v[12:15] offset:1024\ns_waitcnt lgkmcnt(0)")
        a.lg.reset()

    def kv_job(self, sc1):
        a = self.a
        ACC, W0, X0, PF = 72, 8, 24, 3
        a(f"""s_lshr_b32 s{sT0}, s{sS}, 2
        s_mul_i32 s{sT0}, s{sT0}, {XN_T}
        s_bfe_u32 s{sT1}, s{sS}, 0x10001
        s_lshl_b32 s{sT2}, s{sT1}, 8
        s_add_u32 s{sT0}, s{sT0}, s{sT2}
        v_lshrrev_b32 v1, 4, v0
        v_and_b32 v2, 15, v0
        v_lshrrev_b32 v3, 1, v1
        v_mul_u32_u24 v3, {XN_KS}, v3
        v_and_b32 v4, 1, v1
        v_mul_u32_u24 v4, {XN_H}, v4
        v_add3_u32 v3, v3, v4, s{sT0}
        v_lshl_add_u32 v3, v2, 4, v3
        v_lshlrev_b32 v4, 8, v1
        v_lshl_add_u32 v4, v2, 3, v4
        v_add_u32 v4, {WK}, v4""")
        lab_v = a.newlabel("kvV"); lab_e = a.newlabel("kvE")
        def loop(isv):
            def rd(kk):
                W = W0 + 4 * (kk % 4); Xr = X0 + 4 * (kk % 4)
                a(f"ds_read_b64_tr_b16 {vr(W,2)}, v4 offset:{kk*1024}"); a.lg.issue(kk)
                a(f"ds_read_b64_tr_b16 {vr(W+2,2)}, v4 offset:{kk*1024+128}"); a.lg.issue(kk)
                a(f"ds_read_b128 {vr(Xr,4)}, v3 offset:{XN + kk*2*XN_KS}"); a.lg.issue(kk)
            for kk in range(PF): rd(kk)
            for kk in range(16):
                a.lg.wait(kk)
                W = W0 + 4 * (kk % 4); Xr = X0 + 4 * (kk % 4)
                A, B = (Xr, W) if isv else (W, Xr)
                a(f"v_mfma_f32_16x16x32_bf16 {vr(ACC,4)}, {vr(A,4)}, {vr(B,4)}, " + ("0" if kk == 0 else vr(ACC, 4)))
                if kk + PF < 16: rd(kk + PF)
        a(f"""s_lshr_b32 s{sT0}, s{sS}, 1
        s_lshl_b32 s{sT2}, s{sT0}, 6
        s_add_u32 s{sT2}, s{sT2}, {RS}
        s_lshr_b32 s{sT0}, s{sS}, 2
        s_lshl_b32 s{sT3}, s{sTB}, 1
        s_add_u32 s{sT3}, s{sT3}, s{sT0}
        s_lshl_b32 s{sT3}, s{sT3}, 11
        s_bitcmp1_b32 s{sS}, 0
        s_cbranch_scc1 {lab_v}""")
        a(f"v_lshl_add_u32 v5, v2, 2, s{sT2}\nds_read_b32 v40, v5"); a.lg.issue("r")
        loop(False)
        a(f"""v_and_b32 v5, 1, v1
        v_lshlrev_b32 v5, 9, v5
        v_lshl_add_u32 v5, v2, 4, v5
        v_lshrrev_b32 v6, 1, v1
        v_lshl_add_u32 v5, v6, 3, v5
        s_lshl_b32 s{sT1}, s{sT1}, 8
        s_add_u32 s{sT3}, s{sT3}, s{sT1}
        v_mov_b32 v41, v40
        v_mov_b32 v42, v40
        v_mov_b32 v43, v40
        s_branch {lab_e}""")
        a.lg.reset()
        a.label(lab_v)
        a(f"v_lshl_add_u32 v5, v1, 4, s{sT2}\nds_read_b128 v[40:43], v5"); a.lg.issue("r")
        loop(True)
        a(f"""v_lshrrev_b32 v5, 1, v1
        v_lshlrev_b32 v5, 8, v5
        v_lshl_add_u32 v5, v2, 4, v5
        v_and_b32 v6, 1, v1
        v_lshl_add_u32 v5, v6, 3, v5
        s_lshl_b32 s{sT1}, s{sT1}, 9
        s_add_u32 s{sT3}, s{sT3}, s{sT1}
        s_add_u32 s{sT3}, s{sT3}, 1024
        s_nop 1""")
        a.lg.reset()
        a.label(lab_e)
        a(f"""v_pk_mul_f32 {vr(ACC,2)}, {vr(ACC,2)}, v[40:41]
        v_pk_mul_f32 {vr(ACC+2,2)}, {vr(ACC+2,2)}, v[42:43]
        v_cvt_pk_bf16_f32 v8, v{ACC}, v{ACC+1}
        v_cvt_pk_bf16_f32 v9, v{ACC+2}, v{ACC+3}
        buffer_store_dwordx2 v[8:9], v5, s[{rWS}:{rWS+3}], s{sT3} offen offset:{WS_KV}{' sc1' if sc1 else ''}""")

    def ffn1(self, sc1):
        a = self.a
        ACC, SET0, NSET = 8, 72, 3
        BRAW, BF, RV, TMP = 120, 136, 152, 72
        NS = 10
        self.srd(rA, pW1, 512 * 3584)
        self.srd(rB, pB1, 3584)
        a(f"""s_and_b32 s{sT0}, s{sS}, 1
        s_add_u32 s{sT1}, s{sG}, s{sT0}
        s_and_b32 s{sT1}, s{sT1}, 3
        s_lshl_b32 s{sT1}, s{sT1}, 7
        s_mul_i32 s{sOff}, s{sS}, 448
        s_add_u32 s{sOff}, s{sOff}, s{sT1}
        s_lshl_b32 s{sT1}, s{sT0}, 6
        s_sub_u32 s{sOff}, s{sOff}, s{sT1}
        s_mov_b32 s{sOff2}, s{sOff}
        s_mul_i32 s{sRing}, s{sG}, {GR_SZ}
        s_add_u32 s{sRing}, s{sRing}, {GR0}
        s_cmp_eq_u32 s{sG}, 3
        s_cselect_b32 s{sT1}, s{sT1}, 0""")
        self.dma_voff(1, 2, 3584)
        self.tr_addr(2, 3, False, None, sct=sT1)
        a(f"v_add_u32 v2, s{sRing}, v2\nv_xor_b32 v3, 64, v2")
        self.xn_addr(4, 5)
        a(f"""v_and_b32 v5, 31, v0
        v_lshlrev_b32 v5, 2, v5
        v_add_u32 v5, {RS}, v5
        v_add_u32 v7, {XN_T}, v4
        v_lshrrev_b32 v6, 5, v0
        v_lshlrev_b32 v6, 3, v6
        s_add_u32 s{sOff2}, s{sOff2}, s{sT1}""")
        lab3 = a.newlabel("f1w3"); labe = a.newlabel("f1e")
        a(f"s_cmp_eq_u32 s{sG}, 3\ns_cbranch_scc1 {lab3}")
        def body(nct):
            a.vm.reset(); a.lg.reset()
            def dma(ks):
                for u in range(2):
                    a(f"s_add_u32 m0, s{sRing}, {(ks % NS)*2048 + u*1024}")
                    if ks or u: a(f"s_add_u32 s{sOff}, s{sOff}, {8*3584}")
                    else: a("s_nop 0")
                    a(f"buffer_load_dwordx4 v1, s[{rA}:{rA+3}], s{sOff} offen lds"); a.vm.issue(("w", ks))
            def rdlist(ks):
                A = SET0 + 16 * (ks % NSET); B = A + 8; o = (ks % NS) * 2048
                l = []
                for ct in range(nct):
                    l.append(f"ds_read_b64_tr_b16 {vr(A+4*ct,2)}, v{2+ct} offset:{o}")
                    l.append(f"ds_read_b64_tr_b16 {vr(A+4*ct+2,2)}, v{2+ct} offset:{o+512}")
                for tt in range(2):
                    l.append(f"ds_read_b128 {vr(B+4*tt,4)}, v{4+3*tt} offset:{XN + ks*XN_KS}")
                return l
            for ks in range(NS): dma(ks)
            for ct in range(nct):
                for q in range(4):
                    a(f"buffer_load_dwordx2 {vr(BRAW+8*ct+2*q,2)}, v6, s[{rB}:{rB+3}], s{sOff2} offen offset:{64*ct+16*q}"); a.vm.issue("b1")
            for tt in range(2):
                a(f"ds_read_b32 v{RV+2*tt}, v5 offset:{128*tt}"); a.lg.issue("r")
            for ks in range(2):
                a.vm.wait(("w", ks))
                for l in rdlist(ks): a(l); a.lg.issue(ks)
            for ks in range(32):
                if ks + 2 < 32: a.vm.wait(("w", ks + 2))
                a.lg.wait(ks)
                A = SET0 + 16 * (ks % NSET); B = A + 8
                rl = rdlist(ks + 2) if ks + 2 < 32 else []
                ms = [(ct, tt) for ct in range(nct) for tt in range(2)]
                per = -(-len(rl) // max(1, len(ms) - 1))
                for n, (ct, tt) in enumerate(ms):
                    c = ACC + 16 * (2 * ct + tt)
                    a(f"v_mfma_f32_32x32x16_bf16 {vr(c,16)}, {vr(A+4*ct,4)}, {vr(B+4*tt,4)}, " + ("0" if ks == 0 else vr(c, 16)))
                    for l in rl[n*per:(n+1)*per]: a(l); a.lg.issue(ks + 2)
                if ks + NS < 32: dma(ks + NS)
            a(f"""s_mov_b32 s{sK0}, {f2u(GC2):#x}
            s_mov_b32 s{sK0+1}, {f2u(GC2):#x}
            s_mov_b32 s{sK0+2}, 1.0
            s_mov_b32 s{sK0+3}, 1.0
            v_mov_b32 v{RV+4}, {f2u(GC1):#x}
            v_mov_b32 v{RV+5}, {f2u(GC1):#x}
            v_lshlrev_b32 v1, 4, v0
            s_lshl_b32 s{sT0}, s{sTB}, 1
            s_mul_i32 s{sT0}, s{sT0}, 112
            s_lshr_b32 s{sT1}, s{sOff2}, 5
            s_add_u32 s{sT0}, s{sT0}, s{sT1}
            s_lshl_b32 s{sT0}, s{sT0}, 10
            s_add_u32 s{sT0}, s{sT0}, {WS_H}
            s_add_u32 s{sT1}, s{sT0}, {112*1024}""")
            a.vm.wait("b1")
            for ct in range(nct):
                for q in range(8):
                    a(f"v_lshlrev_b32 v{BF+2*q}, 16, v{BRAW+8*ct+q}\nv_and_b32 v{BF+2*q+1}, 0xffff0000, v{BRAW+8*ct+q}")
                for tt in range(2):
                    c = ACC + 16 * (2 * ct + tt)
                    for half in range(2):
                        seqs = []
                        for p in range(4):
                            x = c + 8 * half + 2 * p; t = TMP + 2 * p; b = BF + 8 * half + 2 * p
                            seqs.append([
                                f"v_pk_fma_f32 {vr(x,2)}, {vr(x,2)}, {vr(RV+2*tt,2)}, {vr(b,2)} op_sel_hi:[1,0,1]",
                                f"v_pk_mul_f32 {vr(t,2)}, {vr(x,2)}, {vr(x,2)}",
                                f"v_pk_fma_f32 {vr(t,2)}, {vr(t,2)}, s[{sK0}:{sK0+1}], {vr(RV+4,2)}",
                                f"v_pk_mul_f32 {vr(t,2)}, {vr(t,2)}, {vr(x,2)}",
                                f"v_exp_f32 v{t}, v{t}", f"v_exp_f32 v{t+1}, v{t+1}",
                                f"v_pk_add_f32 {vr(t,2)}, {vr(t,2)}, s[{sK0+2}:{sK0+3}]",
                                f"v_rcp_f32 v{t}, v{t}", f"v_rcp_f32 v{t+1}, v{t+1}",
                                f"v_pk_mul_f32 {vr(t,2)}, {vr(t,2)}, {vr(x,2)}",
                                f"v_cvt_pk_bf16_f32 v{TMP+8+4*((2*tt+half)%2)+p}, v{t}, v{t+1}"])
                        for k in range(len(seqs[0])):
                            for s in seqs: a(s[k])
                        o = TMP + 8 + 4 * ((2 * tt + half) % 2)
                        a(f"buffer_store_dwordx4 {vr(o,4)}, v1, s[{rWS}:{rWS+3}], s{sT0+tt} offen offset:{(2*ct+half)*1024}{' sc1' if sc1 else ''}")
                        a.vm.issue("h")
        body(2)
        a(f"s_branch {labe}")
        a.label(lab3)
        body(1)
        a.label(labe)
        a.vm.reset(); a.lg.reset()

    O0, S0, Q0, KV0, VIDX, VK, VV = 8, 72, 104, 120, 144, 145, 146
    def attn_setup(self):
        a = self.a
        a(f"""s_and_b32 s{sKQ}, s{sWave}, 3
        s_lshr_b32 s{sTG}, s{sWave}, 2
        v_lshlrev_b32 v{self.VK}, 4, v0
        v_lshrrev_b32 v1, 5, v0
        v_and_b32 v2, 15, v0
        v_lshlrev_b32 v1, 8, v1
        v_lshl_add_u32 v{self.VV}, v2, 4, v1
        v_mov_b32 v{self.VIDX}, 0xdddd
        s_mov_b32 s{sMaskV}, 0x0000ffff
        s_mov_b32 s{sMaskV+1}, 0x0000ffff
        s_mov_b32 s{sMaskV+2}, 0x00110000
        s_mov_b32 s{sMaskV+3}, 0x00110000
        v_mov_b32 v1, 0
        v_mov_b32 v2, 0x3f803f80
        v_cndmask_b32 v1, v1, v2, s[{sMaskV+2}:{sMaskV+3}]""")
        for b in range(2):
            for i in range(4, 12): a(f"v_mov_b32 v{self.KV0+12*b+i}, v1")
        for i in range(64): a(f"v_mov_b32 v{self.O0+i}, 0")
        for i in range(8, 16): a(f"v_mov_b32 v{self.S0+16+i}, 0")

    def q_from_ws(self):
        a = self.a
        a(f"""s_lshl_b32 s{sT0}, s{sTB}, 1
        s_add_u32 s{sT0}, s{sT0}, s{sTG}
        s_lshl_b32 s{sT0}, s{sT0}, 5
        s_lshl_b32 s{sT1}, s{sS}, 2
        s_add_u32 s{sT0}, s{sT0}, s{sT1}""")
        for j in range(4):
            a(f"""s_add_u32 s{sT1}, s{sKQ}, {j}
            s_and_b32 s{sT1}, s{sT1}, 3
            s_add_u32 s{sT1}, s{sT1}, s{sT0}
            s_lshl_b32 s{sT1}, s{sT1}, 10
            s_add_u32 s{sT1}, s{sT1}, {WS_Q}
            buffer_load_dwordx4 {vr(self.Q0+4*j,4)}, v{self.VK}, s[{rWS}:{rWS+3}], s{sT1} offen""")

    def ldK(self, b, off):
        self.a(f"buffer_load_dwordx4 {vr(self.KV0+12*b,4)}, v{self.VK}, s[{rWS}:{rWS+3}], s{sOff} offen offset:{off} sc1")
    def ldV(self, b, st, off):
        self.a(f"""s_mov_b64 exec, s[{sMaskV}:{sMaskV+1}]
        buffer_load_dwordx4 {vr(self.KV0+12*b+4+4*st,4)}, v{self.VV}, s[{rWS}:{rWS+3}], s{sOff} offen offset:{off+1024+512*st} sc1
        s_mov_b64 exec, -1""")

    def attn_loop(self):
        a = self.a
        O0, S0, Q0, KV0 = self.O0, self.S0, self.Q0, self.KV0
        a(f"s_lshl_b32 s{sOff}, s{sKQ}, 15\ns_add_u32 s{sOff}, s{sOff}, {WS_KV}")
        self.ldK(0, 0); self.ldV(0, 0, 0); self.ldV(0, 1, 0); self.ldK(1, 2048); self.ldV(1, 0, 2048)
        a(f"s_mov_b32 s{sCnt}, 8\ns_waitcnt vmcnt(4) lgkmcnt(0)")
        a(f"v_mfma_f32_32x32x16_bf16 {vr(S0,16)}, {vr(KV0,4)}, {vr(Q0,4)}, 0")
        if self.stamps: self.stamp(6); a("s_waitcnt vmcnt(0)")
        a("s_nop 7\ns_nop 3")
        loop = a.newlabel("attn")
        a(".p2align 6")
        a.label(loop)
        for kb in range(2):
            for t in range(4):
                u = 4 * kb + t
                cur = S0 + 16 * (u & 1); oth = S0 + 16 * (1 - (u & 1))
                pb = kb if t else 1 - kb; pt = (t - 1) & 3
                nb = kb if t < 3 else 1 - kb; nt = (t + 1) & 3
                ex = lambda lo, hi: [a(f"v_exp_f32 v{cur+j}, v{cur+j}") for j in range(lo, hi)]
                ex(0, 2)
                a(f"v_smfmac_f32_32x32x32_bf16 {vr(O0+16*pt,16)}, {vr(KV0+12*pb+8,4)}, {vr(oth+8,8)}, v{self.VIDX}")
                if t == 0: self.ldV(1 - kb, 1, 2048 * (kb + 1) if kb == 0 else 0)
                if t == 3: a("s_waitcnt vmcnt(3)")
                ex(2, 5)
                a(f"v_mfma_f32_32x32x16_bf16 {vr(oth,16)}, {vr(KV0+12*nb,4)}, {vr(Q0+4*nt,4)}, 0")
                if t == 0: a("s_waitcnt vmcnt(4)")
                if t == 2:
                    if kb == 0: a(f"s_add_u32 s{sOff}, s{sOff}, 4096")
                    self.ldK(kb, 2048 * kb)
                ex(5, 11)
                a(f"v_smfmac_f32_32x32x32_bf16 {vr(O0+16*t,16)}, {vr(KV0+12*kb+4,4)}, {vr(cur,8)}, v{self.VIDX}")
                if t == 0: a("s_waitcnt vmcnt(3)")
                if t == 3: self.ldV(kb, 0, 2048 * kb)
                if u == 6: a(f"s_sub_u32 s{sCnt}, s{sCnt}, 1\ns_cmp_lg_u32 s{sCnt}, 0")
                ex(11, 16)
        a(f"s_cbranch_scc1 {loop}")
        a("s_nop 1")
        a(f"v_smfmac_f32_32x32x32_bf16 {vr(O0+48,16)}, {vr(KV0+12+8,4)}, {vr(S0+16+8,8)}, v{self.VIDX}")

    def attn_reduce(self, sc1):
        a = self.a
        O0 = self.O0
        a(f"v_lshlrev_b32 v1, 4, v0\nv_lshlrev_b32 v2, 2, v0")
        A = 72
        for j in (1, 2, 3):
            a(f"""s_add_u32 s{sT0}, s{sKQ}, {j}
            s_and_b32 s{sT0}, s{sT0}, 3
            s_lshl_b32 s{sT1}, s{sTG}, 2
            s_add_u32 s{sT0}, s{sT0}, s{sT1}
            s_mul_i32 s{sT0}, s{sT0}, {3*RED_SLOT}
            v_add_u32 v{A+2*j}, s{sT0}, v1
            v_add_u32 v{A+2*j+1}, s{sT0}, v2""")
        a(f"""s_lshl_b32 s{sT1}, s{sTG}, 2
        s_add_u32 s{sT0}, s{sKQ}, s{sT1}
        s_mul_i32 s{sT0}, s{sT0}, {3*RED_SLOT}
        v_add_u32 v{A}, s{sT0}, v1
        v_add_u32 v{A+1}, s{sT0}, v2
        s_lshl_b32 s{sT1}, s{sTG}, 2
        s_add_u32 s{sT1}, s{sT1}, {CNT}
        v_mov_b32 v3, s{sT1}
        v_mov_b32 v4, 1""")
        for j in (1, 2, 3):
            o = RED + (j - 1) * RED_SLOT
            a(f"""ds_write_b128 v{A+2*j}, {vr(O0+16*j,4)} offset:{o}
            ds_write_b128 v{A+2*j}, {vr(O0+16*j+4,4)} offset:{o+1024}
            ds_write_b32 v{A+2*j+1}, v{O0+16*j+8} offset:{o+2048}""")
        spin = a.newlabel("redspin")
        a(f"""s_waitcnt lgkmcnt(0)
        s_mov_b64 exec, 1
        ds_add_u32 v3, v4
        s_mov_b64 exec, -1""")
        a.label(spin)
        a(f"""ds_read_b32 v5, v3
        s_waitcnt lgkmcnt(0)
        v_readfirstlane_b32 s{sT0}, v5
        s_and_b32 s{sT0}, s{sT0}, 0xff
        s_cmp_lt_u32 s{sT0}, 4
        s_cbranch_scc1 {spin}""")
        R = 24
        for j in range(3):
            o = RED + j * RED_SLOT
            a(f"""ds_read_b128 {vr(R+12*j,4)}, v{A} offset:{o}
            ds_read_b128 {vr(R+12*j+4,4)}, v{A} offset:{o+1024}
            ds_read_b32 v{R+12*j+8}, v{A+1} offset:{o+2048}""")
        a(f"""s_lshl_b32 s{sT0}, s{sTB}, 1
        s_add_u32 s{sT0}, s{sT0}, s{sTG}
        s_lshl_b32 s{sT0}, s{sT0}, 5
        s_lshl_b32 s{sT1}, s{sS}, 2
        s_add_u32 s{sT0}, s{sT0}, s{sT1}
        s_add_u32 s{sT0}, s{sT0}, s{sKQ}
        s_lshl_b32 s{sT0}, s{sT0}, 10
        s_add_u32 s{sT0}, s{sT0}, {WS_O}""")
        for j in range(3):
            a(f"s_waitcnt lgkmcnt({6-3*j})")
            a(f"v_add_f32 v{O0+8}, v{O0+8}, v{R+12*j+8}")
            if j == 2: a(f"v_rcp_f32 v{O0+8}, v{O0+8}")
            for i in range(0, 8, 2):
                a(f"v_pk_add_f32 {vr(O0+i,2)}, {vr(O0+i,2)}, {vr(R+12*j+i,2)}")
        for i in range(0, 8, 2):
            a(f"v_pk_mul_f32 {vr(O0+i,2)}, {vr(O0+i,2)}, {vr(O0+8,2)} op_sel_hi:[1,0]")
        for i in range(4):
            a(f"v_cvt_pk_bf16_f32 v{R+i}, v{O0+2*i}, v{O0+2*i+1}")
        a(f"buffer_store_dwordx4 {vr(R,4)}, v1, s[{rWS}:{rWS+3}], s{sT0} offen{' sc1' if sc1 else ''}")

    def ffn2(self, sc1):
        a = self.a
        ACC, A0, B0, NB = 8, 72, 88, 8
        NS, D = 10, 8
        f = " sc1" if sc1 else ""
        a.vm.reset(); a.lg.reset()
        self.srd(rA, pW2, 1792 * 1024)
        self.srd(rB, pWO, 512 * 1024)
        a(f"""s_mul_i32 s{sRing}, s{sG}, {GR_SZ}
        s_add_u32 s{sRing}, s{sRing}, {GR0}
        s_lshl_b32 s{sT0}, s{sS}, 7
        s_mul_i32 s{sOff}, s{sG}, {28*16*1024}
        s_add_u32 s{sOff}, s{sOff}, s{sT0}
        s_lshl_b32 s{sOff2}, s{sG}, 17
        s_add_u32 s{sOff2}, s{sOff2}, s{sT0}
        s_lshl_b32 s{sT0}, s{sTB}, 1
        s_mul_i32 s{sT1}, s{sT0}, 112
        s_mul_i32 s{sT2}, s{sG}, 28
        s_add_u32 s{sT1}, s{sT1}, s{sT2}
        s_lshl_b32 s{sT1}, s{sT1}, 10
        s_add_u32 s{sK0}, s{sT1}, {WS_H}
        s_add_u32 s{sK0+1}, s{sK0}, {112*1024}
        s_lshl_b32 s{sT0}, s{sT0}, 5
        s_lshl_b32 s{sT2}, s{sG}, 3
        s_add_u32 s{sT0}, s{sT0}, s{sT2}
        s_lshl_b32 s{sT0}, s{sT0}, 10
        s_add_u32 s{sK0+2}, s{sT0}, {WS_O}
        s_add_u32 s{sK0+3}, s{sK0+2}, {32*1024}""")
        self.dma_voff(1, 2, 1024)
        self.tr_addr(2, 3, True, None)
        a(f"v_add_u32 v2, s{sRing}, v2\nv_xor_b32 v3, 64, v2\nv_lshlrev_b32 v4, 4, v0")
        NT = 36
        def dma(st):
            r, so = (rA, sOff) if st < 28 else (rB, sOff2)
            for u in range(2):
                a(f"s_add_u32 m0, s{sRing}, {(st % NS)*2048 + u*1024}")
                if (st not in (0, 28)) or u: a(f"s_add_u32 s{so}, s{so}, 8192")
                else: a("s_nop 0")
                a(f"buffer_load_dwordx4 v1, s[{r}:{r+3}], s{so} offen lds"); a.vm.issue(("w", st))
        def ldb(st):
            B = B0 + 8 * (st % NB)
            for tt in range(2):
                if st < 28:
                    base, k = sK0 + tt, st
                else:
                    base, k = sK0 + 2 + tt, st - 28
                if k and k % 4 == 0: a(f"s_add_u32 s{base}, s{base}, 4096")
                a(f"buffer_load_dwordx4 {vr(B+4*tt,4)}, v4, s[{rWS}:{rWS+3}], s{base} offen offset:{(k%4)*1024}{f}"); a.vm.issue(("b", st))
        def rdlist(st):
            A = A0 + 8 * (st % 2); o = (st % NS) * 2048
            return [f"ds_read_b64_tr_b16 {vr(A+4*ct+2*u,2)}, v{2+ct} offset:{o+1024*u}" for ct in range(2) for u in range(2)]
        for st in range(D):
            dma(st)
            if st < D - 1: ldb(st)
        a.vm.wait(("w", 0))
        for l in rdlist(0): a(l); a.lg.issue(0)
        for st in range(NT):
            tags = [("b", st)] + ([("w", st + 1)] if st + 1 < NT else [])
            a.vm.wait(*tags)
            a.lg.wait(st)
            A = A0 + 8 * (st % 2); B = B0 + 8 * (st % NB)
            rl = rdlist(st + 1) if st + 1 < NT else []
            for n, (ct, tt) in enumerate([(0, 0), (0, 1), (1, 0), (1, 1)]):
                c = ACC + 16 * (2 * ct + tt)
                a(f"v_mfma_f32_32x32x16_bf16 {vr(c,16)}, {vr(A+4*ct,4)}, {vr(B+4*tt,4)}, " + ("0" if st == 0 else vr(c, 16)))
                if n < 2:
                    for l in rl[2*n:2*n+2]: a(l); a.lg.issue(st + 1)
                if n == 2 and st + D < NT: dma(st + D)
                if n == 3 and st + D - 1 < NT: ldb(st + D - 1)
        a(f"""v_and_b32 v1, 31, v0
        v_mul_u32_u24 v1, {FIN_ROW}, v1
        v_lshrrev_b32 v2, 5, v0
        v_lshlrev_b32 v2, 4, v2
        v_add3_u32 v1, v1, v2, s{sRing}
        s_nop 3""")
        for m, (ct, tt) in enumerate([(0, 0), (0, 1), (1, 0), (1, 1)]):
            if m == 3: a("s_nop 0")
            for q in range(4):
                a(f"ds_write_b128 v1, {vr(ACC+16*m+4*q,4)} offset:{tt*32*FIN_ROW + ct*128 + q*32}")
        a("s_waitcnt lgkmcnt(0)")

    def final_pre(self):
        a = self.a
        self.srd(rX, pX, 2048 * 1024)
        self.srd(rA, pB2, 1024)
        self.srd(rB, pOUT, 2048 * 1024)
        a(f"""v_lshrrev_b32 v1, 3, v0
        v_and_b32 v2, 7, v0
        v_lshlrev_b32 v3, 4, v2
        v_lshl_add_u32 v4, v1, 10, v3
        s_lshl_b32 s{sT0}, s{sTB}, 3
        s_add_u32 s{sT0}, s{sT0}, s{sWave}
        s_lshl_b32 s{sT0}, s{sT0}, 13
        s_lshl_b32 s{sT1}, s{sS}, 7
        s_add_u32 s{sOff}, s{sT0}, s{sT1}
        buffer_load_dwordx4 v[8:11], v4, s[{rX}:{rX+3}], s{sOff} offen
        buffer_load_dwordx4 v[12:15], v3, s[{rA}:{rA+3}], s{sT1} offen
        s_mul_i32 s{sT0}, s{sWave}, {8*FIN_ROW}
        v_mul_u32_u24 v5, {FIN_ROW}, v1
        v_lshl_add_u32 v5, v2, 5, v5
        v_add_u32 v5, s{sT0}, v5
        v_add_u32 v5, {GR0}, v5
        s_waitcnt vmcnt(0)""")
        for i in range(4):
            a(f"""v_lshlrev_b32 v{16+2*i}, 16, v{8+i}
            v_and_b32 v{17+2*i}, 0xffff0000, v{8+i}
            v_lshlrev_b32 v{24+2*i}, 16, v{12+i}
            v_and_b32 v{25+2*i}, 0xffff0000, v{12+i}""")
        for i in range(4): a(f"v_pk_add_f32 {vr(16+2*i,2)}, {vr(16+2*i,2)}, {vr(24+2*i,2)}")

    def final_post(self):
        a = self.a
        for g in range(4):
            a(f"ds_read_b128 {vr(32+8*g,4)}, v5 offset:{g*GR_SZ}\nds_read_b128 {vr(36+8*g,4)}, v5 offset:{g*GR_SZ+16}")
        for g in range(4):
            a(f"s_waitcnt lgkmcnt({6-2*g})")
            for i in range(4): a(f"v_pk_add_f32 {vr(16+2*i,2)}, {vr(16+2*i,2)}, {vr(32+8*g+2*i,2)}")
        for i in range(4): a(f"v_cvt_pk_bf16_f32 v{8+i}, v{16+2*i}, v{17+2*i}")
        a(f"buffer_store_dwordx4 v[8:11], v4, s[{rB}:{rB+3}], s{sOff} offen")

    def kernel_begin(self, name):
        a = self.a
        a.vm.reset(); a.lg.reset()
        a(f".globl {name}\n.p2align 8\n.type {name},@function")
        a.label(name)
    def to_G(self, lab):
        self.a(f"s_cmp_ge_u32 s{sWave}, 8\ns_cbranch_scc1 {lab}")

    def k1(self, name):
        a = self.a
        self.kernel_begin(name)
        end, G, kv = name + "_end", name + "_G", name + "_kv"
        self.prologue(end); self.to_G(G)
        self.stamp(0); self.ln_load(); self.ln_compute(); self.stamp(1)
        a("s_barrier"); self.stamp(2)
        a(f"s_cmp_ge_u32 s{sWave}, 4\ns_cbranch_scc1 {kv}")
        self.q_job(True); self.stamp(3)
        a(f"s_barrier\ns_branch {end}")
        a.label(kv)
        skip = a.newlabel("nokv")
        a(f"s_cmp_lg_u32 s{sWave}, 4\ns_cbranch_scc1 {skip}")
        self.kv_job(False); self.stamp(3)
        a.label(skip)
        a(f"s_barrier\ns_branch {end}")
        a.label(G)
        a(f"s_sub_u32 s{sG}, s{sWave}, 8")
        a.vm.reset(); self.stamp(0)
        self.stage_qk()
        a.vm.wait_all(); self.stamp(1)
        a("s_barrier\ns_barrier"); self.stamp(2)
        self.ffn1(False); self.stamp(3); a("s_waitcnt vmcnt(0)"); self.stamp(4)
        a.label(end); a("s_endpgm")

    def k0(self, name):
        self.kernel_begin(name); self.a("s_endpgm")

    def kz(self, name):
        a = self.a
        wave, idx, mode = self.readout
        self.kernel_begin(name)
        end = name + "_end"
        a(f"s_cmp_lg_u32 s2, 0\ns_cbranch_scc1 {end}")
        self.prologue(end)
        a(f"s_cmp_lg_u32 s{sWave}, 0\ns_cbranch_scc1 {end}")
        a(f"v_mul_u32_u24 v1, {4*12*64}, v0\ns_mov_b32 s{sT0}, {0xE00000 + wave*64 + idx*4}")
        for i in range(4): a(f"buffer_load_dword v{8+i}, v1, s[{rWS}:{rWS+3}], s{sT0} offen offset:{i*768} sc1")
        a("s_waitcnt vmcnt(0)")
        for i in range(1, 4): a(f"v_{mode}_u32 v8, v8, v{8+i}")
        a("s_nop 1\nv_readlane_b32 s64, v8, 0")
        for l in range(1, 64): a(f"v_readlane_b32 s65, v8, {l}\ns_nop 0\ns_{mode}_u32 s64, s64, s65")
        a("s_add_u32 s64, s64, 10000")
        sp = a.newlabel("spin"); a.label(sp)
        a(f"s_memrealtime s[66:67]\ns_waitcnt lgkmcnt(0)\ns_sub_u32 s68, s66, s64\ns_cmp_lt_i32 s68, 0\ns_cbranch_scc1 {sp}")
        a.label(end); a("s_endpgm")

    def k2(self, name):
        a = self.a
        self.kernel_begin(name)
        end = name + "_end"
        self.prologue(end); self.to_G(end)
        a(f"v_mov_b32 v1, 0\nv_lshlrev_b32 v2, 2, v0\nv_and_b32 v2, 63, v2\nv_add_u32 v2, {CNT}, v2\nds_write_b32 v2, v1\ns_waitcnt lgkmcnt(0)\ns_barrier")
        self.stamp(5); self.attn_setup(); self.q_from_ws(); self.attn_loop(); self.stamp(7); self.attn_reduce(False); self.stamp(8)
        a.label(end); a("s_endpgm")

    def k3(self, name):
        a = self.a
        self.kernel_begin(name)
        end, G = name + "_end", name + "_G"
        self.prologue(end); self.to_G(G)
        self.stamp(9); self.final_pre()
        a("s_barrier"); self.stamp(11)
        self.final_post(); self.stamp(12)
        a(f"s_branch {end}")
        a.label(G)
        a(f"s_sub_u32 s{sG}, s{sWave}, 8")
        self.stamp(9); self.ffn2(False); self.stamp(10)
        a("s_barrier")
        a.label(end); a("s_endpgm")

GC1 = -2.0 * math.sqrt(2.0 / math.pi) * LOG2E
GC2 = GC1 * 0.044715

def descriptor(name):
    return f""".amdhsa_kernel {name}
  .amdhsa_next_free_vgpr {NV}
  .amdhsa_next_free_sgpr 96
  .amdhsa_accum_offset {NV}
  .amdhsa_group_segment_fixed_size 0
  .amdhsa_kernarg_size 104
  .amdhsa_user_sgpr_count 2
  .amdhsa_user_sgpr_kernarg_segment_ptr 1
  .amdhsa_system_sgpr_workgroup_id_x 1
.end_amdhsa_kernel
"""

def build(mode="split", order=None, mimic=True, stamps=False, readout=None):
    g = Gen(mimic=mimic, stamps=stamps)
    a = g.a
    if mode == "split":
        ks = {"k1_kernel": g.k1, "k2_kernel": g.k2, "k3_kernel": g.k3}
        order = order or list(ks)
        if "k0_kernel" in order: ks["k0_kernel"] = g.k0
        if readout:
            g.readout = readout; ks["kz_kernel"] = g.kz; order = order + ["kz_kernel"]
        head = "".join(f"; @launch kernel={k} grid=(256,1,1) block=(768,1,1) lds={LDS_BYTES}\n" for k in order)
    head += '.amdgcn_target "amdgcn-amd-amdhsa--gfx950"\n.text\n'
    for k, fn in ks.items(): fn(k)
    probs = lint(a.lines)
    for p in probs: print("LINT:", p, file=sys.stderr)
    tail = '.section .rodata,"a"\n' + "".join(".p2align 6\n" + descriptor(k) for k in ks)
    return head + a.text() + tail

if __name__ == "__main__":
    import argparse
    ap = argparse.ArgumentParser()
    ap.add_argument("-o", default="out.s"); ap.add_argument("--mode", default="split")
    ap.add_argument("--stamps", action="store_true"); ap.add_argument("--nomimic", action="store_true")
    ap.add_argument("--order", default=None); ap.add_argument("--readout", default=None)
    x = ap.parse_args(); out = x.o
    open(out, "w").write(build(x.mode, x.order.split(",") if x.order else None, not x.nomimic, x.stamps, (int(x.readout.split(',')[0]), int(x.readout.split(',')[1]), x.readout.split(',')[2]) if x.readout else None))
    print("wrote", out)
```

```python
import sys, math, struct, argparse
from asmlib import *

NAME = "parallel_sum__grouped_kv_mqa__dense_activation_gelu__prompt"
def f2u(x): return struct.unpack("<I", struct.pack("<f", x))[0]
LOG2E = 1.4426950408889634
GC1 = -2.0 * math.sqrt(2.0 / math.pi) * LOG2E
GC2 = GC1 * 0.044715

XN, XN_T, XN_KS, XN_H = 0, 33792, 1056, 528
WQ = 67584
WK = WQ + 65536
RS = WK + 16384
QX = RS + 256
CNT = QX + 8192
C_F1, C_OD, C_LN, C_QD, C_KV, C_NON = 24, 28, 32, 36, 40, 64
LDS_BYTES = CNT + 128
GR0, GR_SZ = WQ, 20480
RED, RED_SLOT = 0, 2304
FIN_ROW = 272
WS_KV = 0
WS_O = 0x300000
WS_H = 0x500000
WS_KVF = 0xD00000
WS_HF = 0xD10000
WS_EPOCH = 0xD20000
WS_STAMP = 0xE00000
WS_BYTES = 0x1000000
pX, pWQ, pWK, pWV, pWO, pBX, pW1, pB1, pW2, pB2, pOUT, pDBG, pWS = range(16, 42, 2)
sWave, sS, sTB, sT0, sT1, sT2, sT3 = 3, 4, 5, 6, 7, 8, 9
sKQ, sTG, sG = 10, 11, 10
sOff, sOff2, sRing, sCnt = 12, 13, 14, 15
sLin, sNonce = 42, 43
rX, rWS, rA, rB, rC = 44, 48, 52, 56, 60
sK0 = 64
sMaskV = 72
sBad, sPass, sKVst, sOst, sFlag, sFin = 76, 77, 78, 79, 80, 81
sLim = 86
sGrp = 87
sH0 = 82
NV = 168

class Gen:
    def __init__(self, o):
        self.a = Asm(); self.o = o; self.inloop = False

    def stamp(self, i):
        if not self.o.stamps: return
        a = self.a
        if i == 15:
            a("s_memrealtime s[90:91]\ns_memtime s[92:93]\nv_mov_b32 v167, 0")
        else:
            a("s_memrealtime s[90:91]\ns_memtime s[92:93]")
        a(f"s_waitcnt lgkmcnt(0)\nv_writelane_b32 v167, s90, {i}\nv_writelane_b32 v167, s92, {16+i}")
        a.lg.reset()
    def stamp_flush(self):
        if not self.o.stamps: return
        self.a(f"""s_mul_i32 s92, s2, 12
        s_add_u32 s92, s92, s{sWave}
        s_lshl_b32 s92, s92, 7
        s_add_u32 s92, s92, {WS_STAMP}
        v_lshlrev_b32 v1, 2, v0
        s_mov_b64 exec, 0xffffffff
        buffer_store_dword v167, v1, s[{rWS}:{rWS+3}], s92 offen""")

    def srd(self, r, ptr, nbytes):
        self.a(f"s_mov_b32 s{r}, s{ptr}\ns_mov_b32 s{r+1}, s{ptr+1}\ns_mov_b32 s{r+2}, {nbytes:#x}\ns_mov_b32 s{r+3}, 0x20000")

    def prologue(self, end):
        a = self.a
        a(f"""s_cmp_ge_u32 s2, 256
        s_cbranch_scc1 {end}
        s_load_dwordx16 s[16:31], s[0:1], 0
        s_load_dwordx8 s[32:39], s[0:1], 64
        s_load_dwordx2 s[40:41], s[0:1], 96
        v_lshrrev_b32 v1, 6, v0
        v_and_b32 v0, 63, v0
        v_readfirstlane_b32 s{sWave}, v1
        s_lshr_b32 s{sT0}, s2, 3
        s_and_b32 s{sS}, s{sT0}, 7
        s_lshr_b32 s{sT0}, s{sT0}, 3
        s_and_b32 s{sTB}, s2, 7
        s_lshl_b32 s{sTB}, s{sTB}, 2
        s_add_u32 s{sTB}, s{sTB}, s{sT0}
        s_lshl_b32 s{sLin}, s{sTB}, 3
        s_add_u32 s{sLin}, s{sLin}, s{sS}
        s_mov_b32 s{sLim}, 0x100000""")

    def epoch_load(self, v):
        self.a(f"s_mov_b32 s{sT0}, {WS_EPOCH}\nbuffer_load_dword v{v}, off, s[{rWS}:{rWS+3}], s{sT0} sc1")
        self.a.vm.issue("ep")
    def epoch_use(self, v):
        a = self.a
        a.vm.wait("ep")
        a(f"v_readfirstlane_b32 s{sNonce}, v{v}\ns_nop 0\ns_mul_i32 s{sNonce}, s{sNonce}, 0x9e3779b1\ns_add_u32 s{sNonce}, s{sNonce}, 0x6a09e667")

    def lds_spin(self, vaddr, off, target, vt, sleep=0, byte=0):
        a = self.a
        sp = a.newlabel("spin"); dn = a.newlabel("spun"); a.label(sp)
        a(f"""ds_read_b32 v{vt}, v{vaddr} offset:{off}
        s_waitcnt lgkmcnt(0)
        v_readfirstlane_b32 s{sT0}, v{vt}
        s_nop 0
        s_bfe_u32 s{sT1}, s{sT0}, {0x80000 + 8*byte:#x}
        s_cmp_ge_u32 s{sT1}, {target}
        s_cbranch_scc1 {dn}""")
        if sleep: a(f"s_sleep {sleep}")
        self.retry(sp); a.label(dn)
    def retry(self, lab):
        self.a(f"s_sub_u32 s{sLim}, s{sLim}, 1\ns_cbranch_scc0 {lab}\ns_mov_b32 s{sLim}, 0")
    def lds_add(self, vaddr, off, vval):
        self.a(f"s_mov_b64 exec, 1\nds_add_u32 v{vaddr}, v{vval} offset:{off}\ns_mov_b64 exec, -1")

    def dma_voff(self, v, t, stride):
        self.a(f"""v_lshrrev_b32 v{v}, 3, v0
        v_and_b32 v{t}, 2, v{v}
        v_lshlrev_b32 v{t}, 1, v{t}
        v_xor_b32 v{t}, v{t}, v0
        v_and_b32 v{t}, 7, v{t}
        v_mul_u32_u24 v{v}, {stride}, v{v}
        v_lshl_add_u32 v{v}, v{t}, 4, v{v}""")
    def tr_addr(self, v, t, perm):
        self.a(f"""v_lshrrev_b32 v{v}, 5, v0
        v_lshlrev_b32 v{v}, {9 if perm else 10}, v{v}
        v_bfe_u32 v{t}, v0, 2, 2
        v_lshl_add_u32 v{v}, v{t}, 7, v{v}
        v_lshrrev_b32 v{t}, 1, v{t}
        v_lshl_add_u32 v{v}, v{t}, 6, v{v}
        v_bfe_u32 v{t}, v0, 4, 1
        v_lshl_add_u32 v{v}, v{t}, 5, v{v}
        v_and_b32 v{t}, 3, v0
        v_lshl_add_u32 v{v}, v{t}, 3, v{v}""")
    def xn_addr(self, v, t):
        self.a(f"""v_lshrrev_b32 v{t}, 5, v0
        v_mul_u32_u24 v{t}, {XN_H}, v{t}
        v_and_b32 v{v}, 31, v0
        v_lshl_add_u32 v{v}, v{v}, 4, v{t}""")

    O0, S0, Q0, KV0 = 8, 72, 104, 120
    VIDX, VK, VV, VJA, VJB, VRS, VJO, VFL, VQR, VRA, VCN, VONE, VC0 = 144, 145, 146, 147, 148, 149, 150, 151, 152, 156, 164, 165, 166
    LX, LT = 72, 104

    def ln_load(self):
        a = self.a; X = self.LX
        lo = a.newlabel("lnlo")
        a(f"""s_and_b32 s{sT0}, s{sWave}, 6
        s_cmp_eq_u32 s{sT0}, 4
        s_cbranch_scc0 {lo}
        s_setprio 3""")
        a.label(lo)
        a(f"""v_lshrrev_b32 v1, 3, v0
        v_and_b32 v2, 7, v0
        v_lshlrev_b32 v3, 10, v1
        v_lshl_add_u32 v3, v2, 4, v3
        s_and_b32 s{sT0}, s{sS}, 6
        s_add_u32 s{sGrp}, s{sWave}, s{sT0}
        s_add_u32 s{sGrp}, s{sGrp}, 4
        s_and_b32 s{sGrp}, s{sGrp}, 7
        s_lshl_b32 s{sT0}, s{sTB}, 3
        s_add_u32 s{sT0}, s{sT0}, s{sGrp}
        s_lshl_b32 s{sFin}, s{sT0}, 13
        s_mov_b32 s{rX+2}, {2048*1024}
        s_mov_b32 s{rX+3}, 0x20000
        v_mov_b32 v{self.VJO}, 0
        s_barrier
        s_waitcnt lgkmcnt(0)
        s_mov_b32 s{rX}, s{pX}
        s_mov_b32 s{rX+1}, s{pX+1}""")
        for i in range(8):
            a(f"buffer_load_dwordx4 {vr(X+4*i,4)}, v3, s[{rX}:{rX+3}], s{sFin} offen offset:{128*i}")
            a.vm.issue(("x", i))

    def a_setup(self):
        a = self.a
        self.srd(rWS, pWS, WS_BYTES)
        a(f"""s_and_b32 s{sKQ}, s{sWave}, 3
        s_lshr_b32 s{sTG}, s{sWave}, 2
        v_lshlrev_b32 v{self.VK}, 4, v0
        s_lshl_b32 s{sT0}, s{sTB}, 1
        s_add_u32 s{sT0}, s{sT0}, s{sTG}
        s_lshl_b32 s{sT0}, s{sT0}, 5
        s_lshl_b32 s{sT1}, s{sS}, 2
        s_add_u32 s{sT0}, s{sT0}, s{sT1}
        s_add_u32 s{sT0}, s{sT0}, s{sKQ}
        s_lshl_b32 s{sT0}, s{sT0}, 10
        s_add_u32 s{sOst}, s{sT0}, {WS_O}""")
        for i in range(4): a(f"v_mov_b32 v{116+i}, -1")
        a(f"buffer_store_dwordx4 v[116:119], v{self.VK}, s[{rWS}:{rWS+3}], s{sOst} offen sc1"); a.vm.issue("clr")
        a(f"""s_mov_b32 s{sK0}, 0x3f803f80
        s_mov_b32 s{sK0+1}, 0x00003f80
        s_mov_b32 s{sK0+2}, 0x3f800000
        s_lshr_b32 s{sT1}, s{sGrp}, 2
        s_mul_i32 s{sT1}, s{sT1}, {XN_T}
        s_and_b32 s{sT2}, s{sGrp}, 3
        s_lshl_b32 s{sT2}, s{sT2}, 7
        s_add_u32 s{sT1}, s{sT1}, s{sT2}
        v_lshrrev_b32 v4, 1, v2
        v_mul_u32_u24 v4, {XN_KS}, v4
        v_and_b32 v5, 1, v2
        v_mul_u32_u24 v5, {XN_H}, v5
        v_add3_u32 v4, v4, v5, s{sT1}
        v_lshl_add_u32 v4, v1, 4, v4
        s_lshl_b32 s{sT2}, s{sGrp}, 5
        s_add_u32 s{sT2}, s{sT2}, {RS}
        v_lshl_add_u32 v5, v1, 2, s{sT2}
        v_mov_b32 v{self.VC0}, {CNT}
        v_lshrrev_b32 v6, 5, v0
        v_and_b32 v7, 15, v0
        v_lshlrev_b32 v6, 8, v6
        v_lshl_add_u32 v{self.VV}, v7, 4, v6
        v_mul_u32_u24 v{self.VFL}, {self.o.fstride}, v0
        s_and_b32 s{sT0}, s{sWave}, 6
        s_cmp_eq_u32 s{sT0}, 4
        s_cselect_b32 s{sT0}, 1, 0
        s_or_b32 s{sT0}, s{sT0}, 0x100
        v_mov_b32 v{self.VONE}, s{sT0}""")
        lk = a.newlabel("setkv"); le = a.newlabel("sete")
        a(f"s_cmp_ge_u32 s{sWave}, 4\ns_cbranch_scc1 {lk}")
        a(f"""s_lshr_b32 s{sT0}, s{sWave}, 1
        s_lshl_b32 s{sT1}, s{sT0}, 6
        s_and_b32 s{sT2}, s{sWave}, 1
        s_mul_i32 s{sT3}, s{sT2}, {XN_T}""")
        self.tr_addr(self.VJA, 6, False)
        a(f"v_xor_b32 v{self.VJA}, s{sT1}, v{self.VJA}\nv_add_u32 v{self.VJA}, {WQ}, v{self.VJA}")
        self.xn_addr(self.VJB, 6)
        a(f"""v_add_u32 v{self.VJB}, s{sT3}, v{self.VJB}
        v_and_b32 v6, 31, v0
        s_lshl_b32 s{sT3}, s{sT2}, 7
        s_add_u32 s{sT3}, s{sT3}, {RS}
        v_lshl_add_u32 v{self.VRS}, v6, 2, s{sT3}
        s_lshl_b32 s{sT2}, s{sT2}, 2
        s_lshl_b32 s{sT0}, s{sT0}, 1
        s_add_u32 s{sT0}, s{sT0}, s{sT2}
        s_lshl_b32 s{sT0}, s{sT0}, 10
        s_add_u32 s{sT0}, s{sT0}, {QX}
        v_add_u32 v{self.VJO}, s{sT0}, v{self.VK}
        s_branch {le}""")
        a.label(lk)
        a(f"s_cmp_lg_u32 s{sWave}, 4\ns_cbranch_scc1 {le}")
        a(f"""s_lshr_b32 s{sT0}, s{sS}, 2
        s_mul_i32 s{sT1}, s{sT0}, {XN_T}
        s_lshl_b32 s{sKVst}, s{sTB}, 1
        s_add_u32 s{sKVst}, s{sKVst}, s{sT0}
        s_lshl_b32 s{sKVst}, s{sKVst}, 11
        s_bfe_u32 s{sT2}, s{sS}, 0x10001
        s_lshl_b32 s{sT3}, s{sT2}, 8
        s_add_u32 s{sT1}, s{sT1}, s{sT3}
        v_lshrrev_b32 v6, 4, v0
        v_and_b32 v7, 15, v0
        v_lshrrev_b32 v104, 1, v6
        v_and_b32 v105, 1, v6
        v_mul_u32_u24 v106, {XN_KS}, v104
        v_mul_u32_u24 v107, {XN_H}, v105
        v_add3_u32 v106, v106, v107, s{sT1}
        v_lshl_add_u32 v{self.VJB}, v7, 4, v106
        v_lshlrev_b32 v106, 8, v6
        v_lshl_add_u32 v106, v7, 3, v106
        v_add_u32 v{self.VJA}, {WK}, v106
        s_lshr_b32 s{sT0}, s{sS}, 1
        s_lshl_b32 s{sT0}, s{sT0}, 6
        s_add_u32 s{sT0}, s{sT0}, {RS}
        s_bitcmp1_b32 s{sS}, 0""")
        lv = a.newlabel("setv")
        a(f"""s_cbranch_scc1 {lv}
        v_lshl_add_u32 v{self.VRS}, v7, 2, s{sT0}
        v_lshlrev_b32 v106, 9, v105
        v_lshl_add_u32 v106, v7, 4, v106
        v_lshl_add_u32 v{self.VJO}, v104, 3, v106
        s_add_u32 s{sKVst}, s{sKVst}, s{sT3}
        s_branch {le}""")
        a.label(lv)
        a(f"""v_lshl_add_u32 v{self.VRS}, v6, 4, s{sT0}
        v_lshlrev_b32 v106, 8, v104
        v_lshl_add_u32 v106, v7, 4, v106
        v_lshl_add_u32 v{self.VJO}, v105, 3, v106
        s_lshl_b32 s{sT2}, s{sT2}, 9
        s_add_u32 s{sKVst}, s{sKVst}, s{sT2}
        s_add_u32 s{sKVst}, s{sKVst}, 1024""")
        a.label(le)

    def attn_setup(self):
        a = self.a
        a(f"""v_mov_b32 v{self.VIDX}, 0xdddd
        s_mov_b32 s{sMaskV}, 0x0000ffff
        s_mov_b32 s{sMaskV+1}, 0x0000ffff
        s_mov_b32 s{sMaskV+2}, 0x00110000
        s_mov_b32 s{sMaskV+3}, 0x00110000
        v_mov_b32 v6, 0
        v_mov_b32 v7, 0x3f803f80
        v_cndmask_b32 v6, v6, v7, s[{sMaskV+2}:{sMaskV+3}]
        s_mul_i32 s{sFlag}, s{sKQ}, {64*self.o.fstride}
        s_add_u32 s{sFlag}, s{sFlag}, {WS_KVF}
        s_mov_b32 s{sPass}, 0
        s_lshl_b32 s{sOff}, s{sKQ}, 15
        s_lshl_b32 s{sT3}, s{sTG}, 2
        v_add_u32 v{self.VCN}, s{sT3}, v{self.VC0}
        v_lshlrev_b32 v7, 2, v0""")
        for b in range(2):
            for i in range(4, 12): a(f"v_mov_b32 v{self.KV0+12*b+i}, v6")
        for i in range(4): a(f"v_mov_b32 v{self.KV0+i}, 0")
        for j in range(4):
            a(f"""s_add_u32 s{sT0}, s{sKQ}, {j+1}
            s_and_b32 s{sT0}, s{sT0}, 3
            s_add_u32 s{sT0}, s{sT0}, s{sT3}
            s_lshl_b32 s{sT1}, s{sT0}, 10
            s_add_u32 s{sT1}, s{sT1}, {QX}
            v_add_u32 v{self.VQR+j}, s{sT1}, v{self.VK}
            s_mul_i32 s{sT0}, s{sT0}, {3*RED_SLOT}
            v_add_u32 v{self.VRA+2*j}, s{sT0}, v{self.VK}
            v_add_u32 v{self.VRA+2*j+1}, s{sT0}, v7""")
        for j in range(4):
            a(f"v_mfma_f32_32x32x16_bf16 {vr(self.O0+16*j,16)}, {vr(self.KV0,4)}, {vr(self.KV0,4)}, 0")

    def red8(self, v):
        for m in ("quad_perm:[1,0,3,2]", "quad_perm:[2,3,0,1]", "row_half_mirror"):
            self.a(f"s_nop 1\nv_add_f32_dpp v{v}, v{v}, v{v} {m} row_mask:0xf bank_mask:0xf")
    def rnd_bf16(self, v):
        self.a(f"v_cvt_pk_bf16_f32 v{v}, v{v}, v{v}\nv_lshlrev_b32 v{v}, 16, v{v}")

    def ln_compute(self):
        a = self.a; X, T = self.LX, self.LT
        for i in range(32):
            if i % 4 == 0: a.vm.wait(("x", i // 4))
            acc = 6 + (i & 1)
            a(f"v_dot2_f32_bf16 v{acc}, v{X+i}, s{sK0}, " + ("0" if i < 2 else f"v{acc}"))
        a("s_nop 2\nv_add_f32 v6, v6, v7")
        self.red8(6)
        a(f"v_mul_f32 v6, {f2u(-1.0/512):#x}, v6")
        if self.o.mimic: self.rnd_bf16(6)
        def cvt(i):
            t = T + 2 * (i % 4)
            a(f"v_cvt_pk_bf16_f32 v{X+i}, v{t}, v{t+1}")
            if i % 4 == 3:
                k = i // 4
                a(f"ds_write_b128 v4, {vr(X+4*k,4)} offset:{XN + k*4*XN_KS}")
        for i in range(32):
            t = T + 2 * (i % 4)
            a(f"v_dot2_f32_bf16 v{t}, v{X+i}, s{sK0+1}, v6\nv_dot2_f32_bf16 v{t+1}, v{X+i}, s{sK0+2}, v6")
            if i >= 2: cvt(i - 2)
        a("s_nop 0"); cvt(30); cvt(31)
        for i in range(32):
            acc = 6 + (i & 1)
            a(f"v_dot2_f32_bf16 v{acc}, v{X+i}, v{X+i}, " + ("0" if i < 2 else f"v{acc}"))
        a("s_nop 2\nv_add_f32 v6, v6, v7")
        self.red8(6)
        if self.o.mimic:
            a(f"v_mul_f32 v6, {f2u(1.0/512):#x}, v6")
            self.rnd_bf16(6)
            a(f"v_add_f32 v6, {f2u(1e-5):#x}, v6")
            self.rnd_bf16(6)
            a("v_sqrt_f32 v6, v6\ns_nop 0")
            self.rnd_bf16(6)
            a("v_rcp_f32 v6, v6")
        else:
            a(f"v_mov_b32 v7, {f2u(1e-5):#x}\nv_fmac_f32 v7, {f2u(1.0/512):#x}, v6\nv_rsq_f32 v6, v7")
        a("s_nop 0\nds_write_b32 v5, v6")
        a("s_waitcnt lgkmcnt(0)")
        self.lds_add(self.VC0, C_LN, self.VONE)

    def q_job(self):
        a = self.a
        ACC, SET, PF = 72, 88, 3
        a.lg.reset()
        def rd(ks):
            A = SET + 8 * (ks % 4)
            a(f"ds_read_b64_tr_b16 {vr(A,2)}, v{self.VJA} offset:{ks*2048}"); a.lg.issue(ks)
            a(f"ds_read_b64_tr_b16 {vr(A+2,2)}, v{self.VJA} offset:{ks*2048+512}"); a.lg.issue(ks)
            a(f"ds_read_b128 {vr(A+4,4)}, v{self.VJB} offset:{XN + ks*XN_KS}"); a.lg.issue(ks)
        for ks in range(PF): rd(ks)
        a(f"ds_read_b32 v7, v{self.VRS}"); a.lg.issue("r")
        a(f"ds_read_b32 v5, v{self.VC0} offset:{C_NON}"); a.lg.issue("r")
        for ks in range(32):
            a.lg.wait(ks)
            A = SET + 8 * (ks % 4)
            a(f"v_mfma_f32_32x32x16_bf16 {vr(ACC,16)}, {vr(A,4)}, {vr(A+4,4)}, " + ("0" if ks == 0 else vr(ACC, 16)))
            if ks + PF < 32: rd(ks + PF)
            if ks == 8: a(f"v_mul_f32 v7, {f2u(0.25*LOG2E):#x}, v7\nv_readfirstlane_b32 s{sNonce}, v5")
        a("s_nop 11")
        for i in range(0, 16, 2):
            a(f"v_pk_mul_f32 {vr(ACC+i,2)}, {vr(ACC+i,2)}, v[6:7] op_sel:[0,1] op_sel_hi:[1,1]")
        for i in range(8):
            a(f"v_cvt_pk_bf16_f32 v{SET+i}, v{ACC+2*i}, v{ACC+2*i+1}")
            if i == 3: a(f"ds_write_b128 v{self.VJO}, {vr(SET,4)}")
        a(f"ds_write_b128 v{self.VJO}, {vr(SET+4,4)} offset:1024\nv_mov_b32 v6, 0x101\ns_waitcnt vmcnt(0) lgkmcnt(0)")
        self.lds_add(self.VC0, C_QD, 6)
        a.lg.reset()

    def kv_job(self):
        a = self.a
        ACC, SET, PF, R = 72, 88, 4, 76
        NSET = 4
        lab_v = a.newlabel("kvV"); lab_e = a.newlabel("kvE")
        def loop(isv):
            a.lg.reset()
            def rd(kk):
                W = SET + 8 * (kk % NSET)
                a(f"ds_read_b64_tr_b16 {vr(W,2)}, v{self.VJA} offset:{kk*1024}"); a.lg.issue(kk)
                a(f"ds_read_b64_tr_b16 {vr(W+2,2)}, v{self.VJA} offset:{kk*1024+128}"); a.lg.issue(kk)
                a(f"ds_read_b128 {vr(W+4,4)}, v{self.VJB} offset:{XN + kk*2*XN_KS}"); a.lg.issue(kk)
            for kk in range(PF): rd(kk)
            a(f"ds_read_b128 {vr(R,4)}, v{self.VRS}" if isv else f"ds_read_b32 v{R}, v{self.VRS}"); a.lg.issue("r")
            a(f"ds_read_b32 v5, v{self.VC0} offset:{C_NON}"); a.lg.issue("r")
            for kk in range(16):
                a.lg.wait(kk)
                W = SET + 8 * (kk % NSET)
                A, B = (W + 4, W) if isv else (W, W + 4)
                a(f"v_mfma_f32_16x16x32_bf16 {vr(ACC,4)}, {vr(A,4)}, {vr(B,4)}, " + ("0" if kk == 0 else vr(ACC, 4)))
                if kk + PF < 16: rd(kk + PF)
            a(f"v_readfirstlane_b32 s{sNonce}, v5\ns_nop 6")
            sel = "" if isv else " op_sel_hi:[1,0]"
            a(f"v_pk_mul_f32 {vr(ACC,2)}, {vr(ACC,2)}, {vr(R,2)}{sel}")
            a(f"v_pk_mul_f32 {vr(ACC+2,2)}, {vr(ACC+2,2)}, {vr(R+2 if isv else R,2)}{sel}")
        a(f"s_bitcmp1_b32 s{sS}, 0\ns_cbranch_scc1 {lab_v}")
        loop(False)
        a(f"s_branch {lab_e}")
        a.label(lab_v)
        loop(True)
        a.label(lab_e)
        a(f"""v_cvt_pk_bf16_f32 v{SET}, v{ACC}, v{ACC+1}
        v_cvt_pk_bf16_f32 v{SET+1}, v{ACC+2}, v{ACC+3}
        buffer_store_dwordx2 {vr(SET,2)}, v{self.VJO}, s[{rWS}:{rWS+3}], s{sKVst} offen offset:{WS_KV} sc1
        v_mov_b32 v7, 0x100
        s_waitcnt vmcnt(1)
        s_mov_b64 exec, 1
        ds_add_u32 v{self.VC0}, v7 offset:{C_QD}
        s_mov_b64 exec, -1
        v_max3_f32 v6, abs(v{ACC}), abs(v{ACC+1}), abs(v{ACC+2})
        v_max_f32 v6, abs(v{ACC+3}), v6
        v_cmp_le_f32 vcc, {f2u(2.0**60):#x}, v6
        s_mul_i32 s{sT1}, s{sLin}, {self.o.fstride}
        s_add_u32 s{sT1}, s{sT1}, {WS_KVF}
        s_cmp_lg_u64 vcc, 0
        s_cselect_b32 s{sT0}, 0x80000000, 0
        s_xor_b32 s{sT0}, s{sT0}, s{sNonce}
        v_mov_b32 v6, s{sT0}
        s_waitcnt vmcnt(0)
        s_mov_b64 exec, 1
        buffer_store_dword v6, off, s[{rWS}:{rWS+3}], s{sT1} sc1
        s_mov_b64 exec, -1""")
        self.stamp(14)
        a.lg.reset()

    def q_read(self):
        a = self.a
        for j in range(4): a(f"ds_read_b128 {vr(self.Q0+4*j,4)}, v{self.VQR+j}")
        for i in range(8, 16): a(f"v_mov_b32 v{self.S0+16+i}, 0")

    def kv_poll(self):
        a = self.a
        lp = a.newlabel("kvpoll"); dn = a.newlabel("kvok")
        a(f"s_lshl_b32 s{sT2}, s{sKQ}, 2\nv_add_u32 v5, s{sT2}, v{self.VC0}\ns_setprio 3")
        self.lds_spin(self.VC0, C_LN, 6, 6)
        if self.o.polldelay == "qd": self.lds_spin(self.VC0, C_QD, 4, 6, sleep=1)
        if self.o.polldelay == "ln": self.lds_spin(self.VC0, C_LN, 12, 6, sleep=1, byte=1)
        a(f"ds_read_b32 v7, v{self.VC0} offset:{C_NON}\ns_waitcnt lgkmcnt(0)\nv_readfirstlane_b32 s{sNonce}, v7\ns_nop 1")
        a.label(lp)
        a(f"""buffer_load_dword v6, v{self.VFL}, s[{rWS}:{rWS+3}], s{sFlag} offen sc1
        s_waitcnt vmcnt(0)
        v_xor_b32 v6, s{sNonce}, v6
        v_lshlrev_b32 v7, 1, v6
        v_cmp_ne_u32 vcc, 0, v7
        s_cbranch_vccz {dn}""")
        if self.o.kvsleep: a(f"s_sleep {self.o.kvsleep}")
        self.retry(lp); a.label(dn)
        a(f"""v_cmp_ne_u32 vcc, 0, v6
        s_nop 0
        s_cmp_lg_u64 vcc, 0
        s_cselect_b32 s{sBad}, 0x101, 1
        v_mov_b32 v6, s{sBad}
        ds_write_b32 v5, v6 offset:{C_KV}
        s_setprio {self.o.prioA[1]}""")
        self.kv_first_loads()

    def kv_lead_wait(self):
        a = self.a
        a(f"s_lshl_b32 s{sT2}, s{sKQ}, 2\nv_add_u32 v5, s{sT2}, v{self.VC0}")
        self.lds_spin(5, C_KV, 1, 6)
        self.kv_first_loads()
        a(f"s_mov_b32 s{sBad}, s{sT0}\ns_setprio {self.o.prioA[0]}")

    def kv_first_loads(self):
        self.ldK(0, 0); self.ldV(0, 0, 0); self.ldV(0, 1, 0); self.ldK(1, 2048); self.ldV(1, 0, 2048)

    def ldK(self, b, off):
        if self.o.nokv and self.inloop: return
        self.a(f"buffer_load_dwordx4 {vr(self.KV0+12*b,4)}, v{self.VK}, s[{rWS}:{rWS+3}], s{sOff} offen offset:{off} sc1")
    def ldV(self, b, st, off):
        if self.o.nokv and self.inloop: return
        self.a(f"""s_mov_b64 exec, s[{sMaskV}:{sMaskV+1}]
        buffer_load_dwordx4 {vr(self.KV0+12*b+4+4*st,4)}, v{self.VV}, s[{rWS}:{rWS+3}], s{sOff} offen offset:{off+1024+512*st} sc1
        s_mov_b64 exec, -1""")

    def red_write(self, j):
        O0, A = self.O0, self.VRA
        o = RED + j * RED_SLOT
        return [f"ds_write_b128 v{A+2*j}, {vr(O0+16*j,4)} offset:{o}",
                f"ds_write_b128 v{A+2*j}, {vr(O0+16*j+4,4)} offset:{o+1024}",
                f"ds_write_b32 v{A+2*j+1}, v{O0+16*j+8} offset:{o+2048}"]

    def attn_body(self, last):
        a = self.a
        O0, S0, Q0, KV0 = self.O0, self.S0, self.Q0, self.KV0
        for kb in range(2):
            for t in range(4):
                u = 4 * kb + t
                fin = last and kb == 1
                cur = S0 + 16 * (u & 1); oth = S0 + 16 * (1 - (u & 1))
                pb_ = kb if t else 1 - kb; pt = (t - 1) & 3
                nb = kb if t < 3 else 1 - kb; nt = (t + 1) & 3
                ex = lambda lo, hi: [a(f"v_exp_f32 v{cur+j}, v{cur+j}") for j in range(lo, hi)]
                ex(0, 2)
                a(f"v_smfmac_f32_32x32x32_bf16 {vr(O0+16*pt,16)}, {vr(KV0+12*pb_+8,4)}, {vr(oth+8,8)}, v{self.VIDX}")
                if t == 0 and not fin: self.ldV(1 - kb, 1, 2048 if kb == 0 else 0)
                if t == 3 and not fin: a(f"s_waitcnt vmcnt({2 if last else 3})")
                if fin and t >= 2: a(self.red_write(t - 2)[1])
                ex(2, 5)
                if not (fin and t == 3):
                    a(f"v_mfma_f32_32x32x16_bf16 {vr(oth,16)}, {vr(KV0+12*nb,4)}, {vr(Q0+4*nt,4)}, 0")
                if t == 0: a(f"s_waitcnt vmcnt({1 if fin else 4})")
                if t == 2 and not last:
                    if kb == 0: a(f"s_add_u32 s{sOff}, s{sOff}, 4096")
                    self.ldK(kb, 2048 * kb)
                if fin and t >= 2: a(self.red_write(t - 2)[2])
                if last and u == 1:
                    self.lds_spin(self.VC0, C_F1, 4, 5)
                ex(5, 11)
                a(f"v_smfmac_f32_32x32x32_bf16 {vr(O0+16*t,16)}, {vr(KV0+12*kb+4,4)}, {vr(cur,8)}, v{self.VIDX}")
                if t == 0: a(f"s_waitcnt vmcnt({0 if fin else 3})")
                if t == 3 and not last: self.ldV(kb, 0, 2048 * kb)
                if fin and t == 1: a('s_nop 0')
                if fin and t >= 1: a(self.red_write(t - 1)[0])
                if u == 6 and not last: a(f"s_sub_u32 s{sCnt}, s{sCnt}, 1\ns_cmp_lg_u32 s{sCnt}, 0")
                ex(11, 16)

    def attn_loop(self):
        a = self.a
        O0, S0, Q0, KV0 = self.O0, self.S0, self.Q0, self.KV0
        a(f"s_mov_b32 s{sCnt}, 7\ns_waitcnt vmcnt(4) lgkmcnt(0)")
        a(f"v_mfma_f32_32x32x16_bf16 {vr(S0,16)}, {vr(KV0,4)}, {vr(Q0,4)}, 0")
        self.stamp(6)
        a("s_nop 11")
        loop = a.newlabel("attn")
        a(".p2align 6")
        a.label(loop)
        self.inloop = True
        self.attn_body(False)
        a(f"s_cbranch_scc1 {loop}")
        if self.o.flip:
            sk = a.newlabel("nofl")
            a(f"s_cmp_eq_u32 s{sTG}, 0\ns_cbranch_scc0 {sk}\ns_setprio {self.o.prioLow}"); a.label(sk)
        self.attn_body(True)
        self.inloop = False
        for l in self.red_write(2)[1:]: a(l)
        a(f"v_smfmac_f32_32x32x32_bf16 {vr(O0+48,16)}, {vr(KV0+12+8,4)}, {vr(S0+16+8,8)}, v{self.VIDX}")
        a(f"s_setprio 3")

    def attn_reduce(self, fb):
        a = self.a
        O0, A = self.O0, self.VRA
        T = O0 + 48
        again = a.newlabel("red"); a.label(again)
        a(f"""v_max3_f32 v6, v{O0+8}, v{O0+24}, v{O0+40}
        v_min3_f32 v7, v{O0+8}, v{O0+24}, v{O0+40}
        s_mov_b32 s{sT0}, {f2u(2.0**-60):#x}
        s_nop 8
        v_max_f32 v6, v6, v{T+8}
        v_min_f32 v7, v7, v{T+8}
        v_cmp_le_f32 vcc, {f2u(2.0**60):#x}, v6
        v_cmp_ge_f32 s[{sT2}:{sT2+1}], s{sT0}, v7
        s_nop 0
        s_or_b64 vcc, vcc, s[{sT2}:{sT2+1}]
        s_cselect_b32 s{sT0}, 0x101, s{sBad}
        v_mov_b32 v4, s{sT0}
        s_waitcnt lgkmcnt(0)""")
        self.lds_add(self.VCN, 0, 4)
        self.lds_spin(self.VCN, 0, 4, 5)
        R = 8
        for j in range(3):
            o = RED + j * RED_SLOT
            a(f"""ds_read_b128 {vr(R+12*j,4)}, v{A+6} offset:{o}
            ds_read_b128 {vr(R+12*j+4,4)}, v{A+6} offset:{o+1024}
            ds_read_b32 v{R+12*j+8}, v{A+7} offset:{o+2048}""")
        a(f"s_lshr_b32 s{sT0}, s{sT0}, 8\ns_cmp_gt_u32 s{sT0}, s{sPass}\ns_cbranch_scc1 {fb}")
        for j in range(3):
            a(f"s_waitcnt lgkmcnt({6-3*j})")
            a(f"v_add_f32 v{T+8}, v{T+8}, v{R+12*j+8}")
            if j == 2: a(f"v_rcp_f32 v{T+8}, v{T+8}")
            for i in range(0, 8, 2):
                a(f"v_pk_add_f32 {vr(T+i,2)}, {vr(T+i,2)}, {vr(R+12*j+i,2)}")
        for i in range(0, 8, 2):
            a(f"v_pk_mul_f32 {vr(T+i,2)}, {vr(T+i,2)}, {vr(T+8,2)} op_sel_hi:[1,0]")
        for i in range(4):
            a(f"v_cvt_pk_bf16_f32 v{R+i}, v{T+2*i}, v{T+2*i+1}")
        for i in range(4):
            a(f"v_min_u32 v{R+i}, -2, v{R+i}")
        a(f"buffer_store_dwordx4 {vr(R,4)}, v{self.VK}, s[{rWS}:{rWS+3}], s{sOst} offen sc1")
        a(f"s_lshl_b32 s{sT0}, s{sTG}, 3\ns_lshl_b32 s{sT0}, 1, s{sT0}\nv_mov_b32 v4, s{sT0}")
        self.lds_add(self.VC0, C_OD, 4)
        return again

    def fallback(self, fb, again):
        a = self.a
        O0, S0, Q0, KV0 = self.O0, self.S0, self.Q0, self.KV0
        M = S0 + 16
        a.label(fb)
        a(f"s_waitcnt vmcnt(0) lgkmcnt(0)\ns_lshl_b32 s{sOff}, s{sKQ}, 15\ns_mov_b32 s{sCnt}, 16\nv_mov_b32 v{self.VONE}, 1")
        for j in range(4): a(f"v_mov_b32 v{M+j}, 0xff800000")
        l1 = a.newlabel("fbmax"); a.label(l1)
        self.ldK(0, WS_KV)
        a("s_waitcnt vmcnt(0)")
        for j in range(4):
            a(f"v_mfma_f32_32x32x16_bf16 {vr(S0,16)}, {vr(KV0,4)}, {vr(Q0+4*j,4)}, 0\ns_nop 15")
            for i in range(0, 16, 2): a(f"v_max3_f32 v{M+j}, v{M+j}, v{S0+i}, v{S0+i+1}")
            a("s_nop 1")
        a(f"s_add_u32 s{sOff}, s{sOff}, 2048\ns_sub_u32 s{sCnt}, s{sCnt}, 1\ns_cmp_lg_u32 s{sCnt}, 0\ns_cbranch_scc1 {l1}")
        for j in range(4):
            a(f"v_mov_b32 v6, v{M+j}\ns_nop 1\nv_permlane32_swap_b32 v{M+j}, v6\ns_nop 1\nv_max_f32 v{M+j}, v{M+j}, v6")
        a(f"v_lshlrev_b32 v6, 2, v0\nv_sub_u32 v6, v6, v{self.VK}\ns_lshl_b32 s{sT0}, s{sKQ}, 8")
        for j in range(4):
            a(f"v_add_u32 v{M+4+j}, v6, v{self.VQR+j}\nv_add_u32 v7, s{sT0}, v{M+4+j}\nds_write_b32 v7, v{M+j}")
        a("s_waitcnt lgkmcnt(0)")
        self.lds_add(self.VCN, 16, self.VONE)
        self.lds_spin(self.VCN, 16, 4, 5)
        for j in range(4):
            for k in range(4): a(f"ds_read_b32 v{S0+k}, v{M+4+j} offset:{256*k}")
            a(f"s_waitcnt lgkmcnt(0)\nv_max3_f32 v{M+j}, v{S0}, v{S0+1}, v{S0+2}\nv_max_f32 v{M+j}, v{M+j}, v{S0+3}")
        for i in range(64): a(f"v_mov_b32 v{O0+i}, 0")
        a(f"s_lshl_b32 s{sOff}, s{sKQ}, 15\ns_mov_b32 s{sCnt}, 16")
        l2 = a.newlabel("fbpv"); a.label(l2)
        self.ldK(0, WS_KV); self.ldV(0, 0, WS_KV); self.ldV(0, 1, WS_KV)
        a("s_waitcnt vmcnt(0)")
        for j in range(4):
            a(f"v_mfma_f32_32x32x16_bf16 {vr(S0,16)}, {vr(KV0,4)}, {vr(Q0+4*j,4)}, 0\ns_nop 15")
            for i in range(16): a(f"v_sub_f32 v{S0+i}, v{S0+i}, v{M+j}")
            for i in range(16): a(f"v_exp_f32 v{S0+i}, v{S0+i}")
            a("s_nop 1")
            a(f"v_smfmac_f32_32x32x32_bf16 {vr(O0+16*j,16)}, {vr(KV0+4,4)}, {vr(S0,8)}, v{self.VIDX}")
            a(f"v_smfmac_f32_32x32x32_bf16 {vr(O0+16*j,16)}, {vr(KV0+8,4)}, {vr(S0+8,8)}, v{self.VIDX}")
        a(f"s_add_u32 s{sOff}, s{sOff}, 2048\ns_sub_u32 s{sCnt}, s{sCnt}, 1\ns_cmp_lg_u32 s{sCnt}, 0\ns_cbranch_scc1 {l2}")
        a(f"s_mov_b32 s{sPass}, 0xffffff\nv_add_u32 v{self.VCN}, 8, v{self.VCN}\ns_nop 15")
        for j in range(3):
            for l in self.red_write(j): a(l)
        a(f"s_branch {again}")

    def final_pre(self):
        a = self.a
        self.srd(rA, pB2, 1024)
        self.srd(rB, pOUT, 2048 * 1024)
        a(f"""v_lshrrev_b32 v1, 3, v0
        v_and_b32 v2, 7, v0
        v_lshlrev_b32 v3, 4, v2
        v_lshl_add_u32 v4, v1, 10, v3
        s_lshl_b32 s{sT1}, s{sS}, 7
        s_add_u32 s{sFin}, s{sFin}, s{sT1}
        buffer_load_dwordx4 v[72:75], v4, s[{rX}:{rX+3}], s{sFin} offen
        buffer_load_dwordx4 v[76:79], v3, s[{rA}:{rA+3}], s{sT1} offen
        s_mul_i32 s{sT0}, s{sGrp}, {8*FIN_ROW}
        s_add_u32 s{sT0}, s{sT0}, {GR0}
        v_mul_u32_u24 v5, {FIN_ROW}, v1
        v_lshl_add_u32 v5, v2, 5, v5
        v_add_u32 v5, s{sT0}, v5
        s_waitcnt vmcnt(0)""")
        for i in range(4):
            a(f"""v_lshlrev_b32 v{80+2*i}, 16, v{72+i}
            v_and_b32 v{81+2*i}, 0xffff0000, v{72+i}
            v_lshlrev_b32 v{88+2*i}, 16, v{76+i}
            v_and_b32 v{89+2*i}, 0xffff0000, v{76+i}""")
        for i in range(4): a(f"v_pk_add_f32 {vr(80+2*i,2)}, {vr(80+2*i,2)}, {vr(88+2*i,2)}")

    def final_post(self):
        a = self.a
        for g in range(4):
            a(f"ds_read_b128 {vr(32+8*g,4)}, v5 offset:{g*GR_SZ}\nds_read_b128 {vr(36+8*g,4)}, v5 offset:{g*GR_SZ+16}")
        for g in range(4):
            a(f"s_waitcnt lgkmcnt({6-2*g})")
            for i in range(4): a(f"v_pk_add_f32 {vr(80+2*i,2)}, {vr(80+2*i,2)}, {vr(32+8*g+2*i,2)}")
        for i in range(4): a(f"v_cvt_pk_bf16_f32 v{8+i}, v{80+2*i}, v{81+2*i}")
        a(f"buffer_store_dwordx4 v[8:11], v4, s[{rB}:{rB+3}], s{sFin} offen")

    GD1, GL16, GT0, GT1, GCN, GONE, GPF, GEP = 160, 161, 162, 163, 164, 165, 166, 159
    def stage_kq(self):
        a = self.a
        a(f"""s_setprio 3
        v_mov_b32 v{self.GCN}, {CNT}
        v_mov_b32 v8, 0
        v_and_b32 v9, 15, v0
        v_lshl_add_u32 v9, v9, 2, v{self.GCN}
        ds_write_b32 v9, v8
        s_sub_u32 s{sG}, s{sWave}, 8
        v_lshlrev_b32 v{self.GL16}, 4, v0
        s_lshl_b32 s{sT0}, s{sG}, 12
        s_add_u32 m0, s{sT0}, {WK}
        s_mov_b32 s{rB+2}, 16384
        s_mov_b32 s{rB+3}, 0x20000
        v_mov_b32 v{self.GONE}, 1""")
        self.dma_voff(self.GD1, 3, 1024)
        a(f"""s_bitcmp1_b32 s{sS}, 0
        s_waitcnt lgkmcnt(0)
        s_barrier
        s_cselect_b32 s{rB}, s{pWV}, s{pWK}
        s_cselect_b32 s{rB+1}, s{pWV+1}, s{pWK+1}""")
        for i in range(4):
            a(f"buffer_load_dwordx4 v{self.GL16}, s[{rB}:{rB+3}], s{sT0} offen offset:{1024*i} lds"); a.vm.issue("wk")
        self.srd(rWS, pWS, WS_BYTES)
        self.epoch_load(self.GEP)
        a("s_setprio 0")
        self.srd(rA, pWQ, 512 * 1024)
        a(f"""s_lshl_b32 s{sT0}, s{sG}, 13
        s_lshl_b32 s{sT1}, s{sS}, 7
        s_add_u32 s{sT0}, s{sT0}, s{sT1}
        s_lshl_b32 s{sT1}, s{sG}, 10""")
        for i in range(16):
            a(f"s_add_u32 m0, s{sT1}, {WQ + 4096*i}")
            if i: a(f"s_add_u32 s{sT0}, s{sT0}, 32768")
            else: a("s_nop 0")
            a(f"buffer_load_dwordx4 v{self.GD1}, s[{rA}:{rA+3}], s{sT0} offen lds"); a.vm.issue("wq")
            if i == self.o.wkat:
                a("s_setprio 3")
                self.epoch_use(self.GEP)
                a(f"v_mov_b32 v8, s{sNonce}\nds_write_b32 v{self.GCN}, v8 offset:{C_NON}\nv_mov_b32 v9, 0x100\ns_waitcnt lgkmcnt(0)")
                self.lds_add(self.GCN, C_LN, self.GONE)
                a("s_setprio 0")

    def prefetch(self, what):
        a = self.a; P = self.GPF
        if what == "w1":
            a(f"""v_lshrrev_b32 v136, 2, v0
            v_mul_u32_u24 v136, 3584, v136
            v_and_b32 v137, 3, v0
            v_lshl_add_u32 v136, v137, 7, v136
            s_and_b32 s{sT0}, s{sTB}, 3
            s_lshl_b32 s{sT0}, s{sT0}, 2
            s_add_u32 s{sT0}, s{sT0}, s{sG}
            s_mul_i32 s{sT0}, s{sT0}, {32*3584}
            s_mul_i32 s{sT1}, s{sS}, 448
            s_and_b32 s{sT1}, s{sT1}, 0xffffff80
            s_add_u32 s{sT0}, s{sT0}, s{sT1}
            buffer_load_dword v{P}, v136, s[{rC}:{rC+3}], s{sT0} offen
            s_add_u32 s{sT0}, s{sT0}, {16*3584}
            buffer_load_dword v{P}, v136, s[{rC}:{rC+3}], s{sT0} offen""")
            a.vm.issue("pf"); a.vm.issue("pf")
        else:
            r, rows, nb = (rA, 448, 112) if what == "w2" else (rB, 128, 32)
            a(f"""v_lshlrev_b32 v136, 10, v0
            s_and_b32 s{sT0}, s{sTB}, 3
            s_mul_i32 s{sT0}, s{sT0}, {nb}
            s_mul_i32 s{sT1}, s{sG}, {rows}
            s_add_u32 s{sT0}, s{sT0}, s{sT1}
            s_lshl_b32 s{sT0}, s{sT0}, 10
            s_lshl_b32 s{sT1}, s{sS}, 7
            s_add_u32 s{sT0}, s{sT0}, s{sT1}""")
            if what == "w2":
                a(f"""buffer_load_dword v{P}, v136, s[{r}:{r+3}], s{sT0} offen
                s_add_u32 s{sT0}, s{sT0}, {48*1024}
                buffer_load_dword v{P}, v136, s[{r}:{r+3}], s{sT0} offen""")
                a.vm.issue("pf"); a.vm.issue("pf")
            else:
                a(f"v_and_b32 v136, 0x7fff, v136\nbuffer_load_dword v{P}, v136, s[{r}:{r+3}], s{sT0} offen"); a.vm.issue("pf")

    def g_setup(self):
        a = self.a
        self.srd(rC, pW1, 512 * 3584)
        a(f"""s_and_b32 s{sT0}, s{sS}, 1
        s_add_u32 s{sT1}, s{sG}, s{sT0}
        s_and_b32 s{sT1}, s{sT1}, 3
        s_lshl_b32 s{sT1}, s{sT1}, 7
        s_mul_i32 s{sOff}, s{sS}, 448
        s_add_u32 s{sOff}, s{sOff}, s{sT1}
        s_lshl_b32 s{sT1}, s{sT0}, 6
        s_sub_u32 s{sOff}, s{sOff}, s{sT1}
        s_mul_i32 s{sRing}, s{sG}, {GR_SZ}
        s_add_u32 s{sRing}, s{sRing}, {GR0}
        s_cmp_eq_u32 s{sG}, 3
        s_cselect_b32 s{sT1}, s{sT1}, 0
        s_add_u32 s{sOff2}, s{sOff}, s{sT1}""")
        self.dma_voff(1, 2, 3584)
        self.tr_addr(2, 3, False)
        a(f"v_xor_b32 v2, s{sT1}, v2\nv_add_u32 v2, s{sRing}, v2\nv_xor_b32 v3, 64, v2")
        self.xn_addr(4, 5)
        a(f"""v_and_b32 v5, 31, v0
        v_lshlrev_b32 v5, 2, v5
        v_add_u32 v5, {RS}, v5
        v_add_u32 v7, {XN_T}, v4
        v_lshrrev_b32 v6, 5, v0
        v_lshlrev_b32 v6, 3, v6""")
        self.tr_addr(self.GT0, 8, True)
        a(f"v_add_u32 v{self.GT0}, s{sRing}, v{self.GT0}\nv_xor_b32 v{self.GT1}, 64, v{self.GT0}")
        a(f"""s_lshl_b32 s{sT0}, s{sTB}, 1
        s_mul_i32 s{sT1}, s{sT0}, 112
        s_mul_i32 s{sT2}, s{sG}, 28
        s_add_u32 s{sT1}, s{sT1}, s{sT2}
        s_lshl_b32 s{sT1}, s{sT1}, 10
        s_add_u32 s{sH0}, s{sT1}, {WS_H}
        s_add_u32 s{sH0+1}, s{sH0}, {112*1024}
        s_lshl_b32 s{sT0}, s{sT0}, 5
        s_lshl_b32 s{sT2}, s{sG}, 3
        s_add_u32 s{sT0}, s{sT0}, s{sT2}
        s_lshl_b32 s{sT0}, s{sT0}, 10
        s_add_u32 s{sH0+2}, s{sT0}, {WS_O}
        s_add_u32 s{sH0+3}, s{sH0+2}, {32*1024}""")

    NS = 10
    @property
    def D2(self): return self.o.depth2
    def dma2(self, st, us=(0, 1)):
        a = self.a
        r, so = (rA, sK0 + 4) if st < 28 else (rB, sK0 + 5)
        for u in us:
            a(f"s_add_u32 m0, s{sRing}, {(st % self.NS)*2048 + u*1024}")
            if (st not in (0, 28)) or u: a(f"s_add_u32 s{so}, s{so}, 8192")
            else: a("s_nop 0")
            a(f"buffer_load_dwordx4 v{self.GD1}, s[{r}:{r+3}], s{so} offen lds"); a.vm.issue(("w", st))

    def ffn1(self):
        a = self.a
        ACC, SET0, NSET = 8, 72, 3
        BRAW, BF, RV, TMP = 120, 136, 152, 72
        NS = self.NS
        rB1 = rX
        self.srd(rB1, pB1, 3584)
        self.srd(rA, pW2, 1792 * 1024)
        self.srd(rB, pWO, 512 * 1024)
        lab3 = a.newlabel("f1w3"); labe = a.newlabel("f1e")
        a(f"s_cmp_eq_u32 s{sG}, 3\ns_cbranch_scc1 {lab3}")
        def body(nct):
            a.vm.reset(); a.lg.reset()
            def dma(ks, us=(0, 1)):
                for u in us:
                    a(f"s_add_u32 m0, s{sRing}, {(ks % NS)*2048 + u*1024}")
                    if ks or u: a(f"s_add_u32 s{sOff}, s{sOff}, {8*3584}")
                    else: a("s_nop 0")
                    a(f"buffer_load_dwordx4 v1, s[{rC}:{rC+3}], s{sOff} offen lds"); a.vm.issue(("w1", ks))
            def rdlist(ks):
                A = SET0 + 16 * (ks % NSET); B = A + 8; o = (ks % NS) * 2048
                l = []
                for ct in range(nct):
                    l.append(f"ds_read_b64_tr_b16 {vr(A+4*ct,2)}, v{2+ct} offset:{o}")
                    l.append(f"ds_read_b64_tr_b16 {vr(A+4*ct+2,2)}, v{2+ct} offset:{o+512}")
                for tt in range(2):
                    l.append(f"ds_read_b128 {vr(B+4*tt,4)}, v{4+3*tt} offset:{XN + ks*XN_KS}")
                return l
            ND = self.o.depth1
            for ks in range(ND): dma(ks)
            for ct in range(nct):
                for q in range(4):
                    a(f"buffer_load_dwordx2 {vr(BRAW+8*ct+2*q,2)}, v6, s[{rB1}:{rB1+3}], s{sOff2} offen offset:{64*ct+16*q}"); a.vm.issue("b1")
            if self.o.pf2 == "b2": self.prefetch("w2")
            for tt in range(2):
                a(f"ds_read_b32 v{RV+2*tt}, v5 offset:{128*tt}"); a.lg.issue("r")
            burst = self.o.burst1
            PF = 2 if burst >= 4 else 1
            for ks in range(PF):
                a.vm.wait(("w1", ks))
                for l in rdlist(ks): a(l); a.lg.issue(ks)
            for ks in range(32):
                if ks + PF < 32: a.vm.wait(("w1", ks + PF))
                a.lg.wait(ks)
                A = SET0 + 16 * (ks % NSET); B = A + 8
                rl = rdlist(ks + PF) if ks + PF < 32 else []
                ms = [(ct, tt) for ct in range(nct) for tt in range(2)]
                nslot = max(1, len(ms) - 2) if burst >= 4 else len(ms)
                cuts = [round(len(rl) * k / nslot) for k in range(nslot + 1)]
                for n, (ct, tt) in enumerate(ms):
                    c = ACC + 16 * (2 * ct + tt)
                    if burst < 4 and n and n % burst == 0 and a.lg.q: a.lg.wait_all()
                    a(f"v_mfma_f32_32x32x16_bf16 {vr(c,16)}, {vr(A+4*ct,4)}, {vr(B+4*tt,4)}, " + ("0" if ks == 0 else vr(c, 16)))
                    if n < nslot:
                        for l in rl[cuts[n]:cuts[n+1]]: a(l); a.lg.issue(ks + PF)
                    if ks + ND < 32 and n >= len(ms) - 2: dma(ks + ND, (n - len(ms) + 2,))
                if ks == 22 and self.o.pf2 == "mid": self.prefetch("w2")
            a("s_setprio 3")
            self.lds_add(self.GCN, C_F1, self.GONE)
            self.stamp(3)
            a(f"""s_lshl_b32 s{sT0}, s{sS}, 7
            s_mul_i32 s{sK0+4}, s{sG}, {28*16*1024}
            s_add_u32 s{sK0+4}, s{sK0+4}, s{sT0}
            s_lshl_b32 s{sK0+5}, s{sG}, 17
            s_add_u32 s{sK0+5}, s{sK0+5}, s{sT0}""")
            for st in range(self.D2): self.dma2(st)
            if self.o.pf3: self.prefetch("wo")
            a(f"""s_mov_b32 s{sK0}, {f2u(GC2):#x}
            s_mov_b32 s{sK0+1}, {f2u(GC2):#x}
            s_mov_b32 s{sK0+2}, 1.0
            s_mov_b32 s{sK0+3}, 1.0
            v_mov_b32 v{RV+4}, {f2u(GC1):#x}
            v_mov_b32 v{RV+5}, {f2u(GC1):#x}
            s_lshl_b32 s{sT0}, s{sTB}, 1
            s_mul_i32 s{sT0}, s{sT0}, 112
            s_lshr_b32 s{sT1}, s{sOff2}, 5
            s_add_u32 s{sT0}, s{sT0}, s{sT1}
            s_lshl_b32 s{sT0}, s{sT0}, 10
            s_add_u32 s{sT0}, s{sT0}, {WS_H}
            s_add_u32 s{sT1}, s{sT0}, {112*1024}""")
            a.vm.wait("b1")
            for ct in range(nct):
                for q in range(8):
                    a(f"v_lshlrev_b32 v{BF+2*q}, 16, v{BRAW+8*ct+q}\nv_and_b32 v{BF+2*q+1}, 0xffff0000, v{BRAW+8*ct+q}")
                for tt in range(2):
                    c = ACC + 16 * (2 * ct + tt)
                    for half in range(2):
                        seqs = []
                        for p in range(4):
                            x = c + 8 * half + 2 * p; t = TMP + 2 * p; b = BF + 8 * half + 2 * p
                            seqs.append([
                                f"v_pk_fma_f32 {vr(x,2)}, {vr(x,2)}, {vr(RV+2*tt,2)}, {vr(b,2)} op_sel_hi:[1,0,1]",
                                f"v_pk_mul_f32 {vr(t,2)}, {vr(x,2)}, {vr(x,2)}",
                                f"v_pk_fma_f32 {vr(t,2)}, {vr(t,2)}, s[{sK0}:{sK0+1}], {vr(RV+4,2)}",
                                f"v_pk_mul_f32 {vr(t,2)}, {vr(t,2)}, {vr(x,2)}",
                                f"v_exp_f32 v{t}, v{t}", f"v_exp_f32 v{t+1}, v{t+1}",
                                f"v_pk_add_f32 {vr(t,2)}, {vr(t,2)}, s[{sK0+2}:{sK0+3}]",
                                f"v_rcp_f32 v{t}, v{t}", f"v_rcp_f32 v{t+1}, v{t+1}",
                                f"v_pk_mul_f32 {vr(t,2)}, {vr(t,2)}, {vr(x,2)}",
                                f"v_cvt_pk_bf16_f32 v{TMP+8+4*half+p}, v{t}, v{t+1}"])
                        for k in range(len(seqs[0])):
                            for s in seqs: a(s[k])
                        o = TMP + 8 + 4 * half
                        a(f"buffer_store_dwordx4 {vr(o,4)}, v{self.GL16}, s[{rWS}:{rWS+3}], s{sT0+tt} offen offset:{(2*ct+half)*1024} sc1")
        body(2)
        a(f"s_branch {labe}")
        a.label(lab3)
        body(1)
        a.label(labe)
        a(f"""s_lshl_b32 s{sT0}, s{sLin}, 7
        s_lshl_b32 s{sT1}, s{sG}, 2
        s_add_u32 s{sT0}, s{sT0}, s{sT1}
        s_add_u32 s{sT0}, s{sT0}, {WS_HF}
        v_mov_b32 v8, s{sNonce}
        s_waitcnt vmcnt(0)
        s_mov_b64 exec, 1
        buffer_store_dword v8, off, s[{rWS}:{rWS+3}], s{sT0} sc1
        s_mov_b64 exec, -1""")
        a.vm.reset(); a.lg.reset()

    def h_wait(self):
        a = self.a
        a(f"""v_bfe_u32 v8, v0, 2, 1
        v_lshlrev_b32 v8, 7, v8
        v_and_b32 v9, 3, v0
        v_lshl_add_u32 v8, v9, 2, v8
        s_lshl_b32 s{sT0}, s{sTB}, 3
        s_lshl_b32 s{sT1}, s{sG}, 1
        s_add_u32 s{sT0}, s{sT0}, s{sT1}
        s_lshl_b32 s{sT0}, s{sT0}, 7
        s_add_u32 s{sT0}, s{sT0}, {WS_HF}""")
        lp = a.newlabel("hpoll"); dn = a.newlabel("hok")
        a.label(lp)
        a(f"""buffer_load_dword v9, v8, s[{rWS}:{rWS+3}], s{sT0} offen sc1
        s_waitcnt vmcnt(0)
        v_cmp_ne_u32 vcc, s{sNonce}, v9
        s_cbranch_vccz {dn}
        s_sleep 4""")
        self.retry(lp); a.label(dn)

    def ffn2(self):
        a = self.a
        ACC, A0, B0, NB = 8, 72, 88, 8
        NS, D = self.NS, self.D2
        a.vm.reset(); a.lg.reset()
        def ldb(st, tts=(0, 1)):
            B = B0 + 8 * (st % NB)
            for tt in tts:
                base = sH0 + tt
                if st and st % 4 == 0: a(f"s_add_u32 s{base}, s{base}, 4096")
                a(f"buffer_load_dwordx4 {vr(B+4*tt,4)}, v{self.GL16}, s[{rWS}:{rWS+3}], s{base} offen offset:{(st%4)*1024} sc1"); a.vm.issue(("b", st))
        def rdlist(st):
            A = A0 + 8 * (st % 2); o = (st % NS) * 2048
            return [f"ds_read_b64_tr_b16 {vr(A+4*ct+2*u,2)}, v{self.GT0+ct} offset:{o+1024*u}" for ct in range(2) for u in range(2)]
        def step(st, B):
            a.lg.wait(st)
            A = A0 + 8 * (st % 2)
            rl = rdlist(st + 1) if st + 1 < 36 else []
            for n, (ct, tt) in enumerate([(0, 0), (0, 1), (1, 0), (1, 1)]):
                c = ACC + 16 * (2 * ct + tt)
                burst = self.o.burst2 if st < 28 else 4
                if burst < 4 and n and n % burst == 0 and a.lg.q: a.lg.wait_all()
                a(f"v_mfma_f32_32x32x16_bf16 {vr(c,16)}, {vr(A+4*ct,4)}, {vr(B+4*tt,4)}, " + ("0" if st == 0 else vr(c, 16)))
                for l in (rl[2*n:2*n+2] if burst >= 4 else rl[n:n+1]): a(l); a.lg.issue(st + 1)
                if n < 2 and st + D < 36 and st < 28: self.dma2(st + D, (n,))
                if n >= 2 and st + D - 1 < 28: ldb(st + D - 1, (n - 2,))
        for st in range(D - 1): ldb(st)
        for l in rdlist(0): a(l); a.lg.issue(0)
        a(f"s_setprio {self.o.prioG2}")
        for st in range(28):
            a.vm.wait(("b", st), ("w", st + 1))
            step(st, B0 + 8 * (st % NB))
        a("s_setprio 3")
        self.stamp(9)
        for st in range(28 + D, 36): self.dma2(st)
        self.lds_spin(self.GCN, C_OD, 4, 1, sleep=1)
        self.lds_spin(self.GCN, C_OD, 4, 1, sleep=1, byte=1)
        a.lg.q = []
        self.stamp(10)
        def oload(hf):
            for k in range(4):
                for tt in range(2):
                    a(f"buffer_load_dwordx4 {vr(B0+32*hf+8*k+4*tt,4)}, v{self.GL16}, s[{rWS}:{rWS+3}], s{sH0+2+tt} offen offset:{k*1024} sc1")
        a(f"s_add_u32 s{sT2}, s{sH0+2}, 4096\ns_add_u32 s{sT3}, s{sH0+3}, 4096")
        oload(0)
        a(f"s_mov_b32 s{sK0}, s{sH0+2}\ns_mov_b32 s{sK0+1}, s{sH0+3}\ns_mov_b32 s{sH0+2}, s{sT2}\ns_mov_b32 s{sH0+3}, s{sT3}")
        oload(1)
        a(f"s_mov_b32 s{sH0+2}, s{sK0}\ns_mov_b32 s{sH0+3}, s{sK0+1}")
        for hf in range(2):
            ck = a.newlabel("ochk"); ok = a.newlabel("ook")
            a(f"s_waitcnt vmcnt({8 if hf == 0 else 0})")
            a.label(ck)
            B = B0 + 32 * hf
            a(f"v_max3_u32 v1, v{B}, v{B+1}, v{B+2}\nv_max3_u32 v2, v{B+3}, v{B+4}, v{B+5}")
            for i in range(6, 30, 4):
                a(f"v_max3_u32 v1, v{B+i}, v{B+i+1}, v1\nv_max3_u32 v2, v{B+i+2}, v{B+i+3}, v2")
            a(f"""v_max3_u32 v1, v{B+30}, v{B+31}, v1
            v_max_u32 v1, v1, v2
            v_cmp_eq_u32 vcc, -1, v1
            s_cbranch_vccz {ok}""")
            oload(hf)
            a(f"s_waitcnt vmcnt(0)")
            self.retry(ck); a.label(ok)
            for k in range(4): step(28 + 4 * hf + k, B + 8 * k)
            if hf == 0: a(f"s_mov_b32 s{sH0+2}, s{sT2}\ns_mov_b32 s{sH0+3}, s{sT3}")
        self.stamp(11)
        a(f"""v_and_b32 v1, 31, v0
        v_mul_u32_u24 v1, {FIN_ROW}, v1
        v_lshrrev_b32 v2, 5, v0
        v_lshlrev_b32 v2, 4, v2
        v_add3_u32 v1, v1, v2, s{sRing}
        s_nop 3""")
        for m, (ct, tt) in enumerate([(0, 0), (0, 1), (1, 0), (1, 1)]):
            for q in range(4):
                a(f"ds_write_b128 v1, {vr(ACC+16*m+4*q,4)} offset:{tt*32*FIN_ROW + ct*128 + q*32}")
        a("s_waitcnt lgkmcnt(0)")

    def kernel_begin(self, name):
        a = self.a
        a.vm.reset(); a.lg.reset()
        a(f".globl {name}\n.p2align 8\n.type {name},@function")
        a.label(name)

    def fused(self, name):
        a = self.a; o = self.o
        self.kernel_begin(name)
        end, G, kv, b2, fb = "L_end", "L_G", "L_kv", "L_b2", "L_fallback"
        self.stamp(15)
        self.prologue(end)
        a(f"s_cmp_ge_u32 s{sWave}, 8\ns_cbranch_scc1 {G}")
        self.ln_load(); self.a_setup()
        late = a.newlabel("late")
        a(f"s_and_b32 s{sT0}, s{sWave}, 6\ns_cmp_eq_u32 s{sT0}, 4\ns_cbranch_scc1 {late}")
        self.attn_setup()
        a.label(late)
        self.stamp(0)
        self.ln_compute(); self.stamp(1)
        a(f"s_cmp_ge_u32 s{sWave}, 4\ns_cbranch_scc1 {kv}")
        self.lds_spin(self.VC0, C_LN, 12, 6, byte=1); self.stamp(2)
        a("s_setprio 2")
        self.q_job(); self.stamp(3)
        self.kv_lead_wait(); self.stamp(5)
        a(f"s_branch {b2}")
        a.label(kv)
        nk = a.newlabel("nokv"); st = a.newlabel("aset"); pl = a.newlabel("apoll")
        a(f"s_cmp_lg_u32 s{sWave}, 4\ns_cbranch_scc1 {nk}")
        self.lds_spin(self.VC0, C_LN, 6, 6); self.stamp(2)
        self.kv_job()
        a(f"s_branch {st}")
        a.label(nk)
        a(f"v_mov_b32 v6, 0x100\ns_waitcnt vmcnt(0)")
        self.lds_add(self.VC0, C_QD, 6)
        a(f"s_cmp_lg_u32 s{sWave}, 5\ns_cbranch_scc1 {pl}")
        a.label(st)
        a("s_setprio 0")
        self.attn_setup()
        a.label(pl)
        self.stamp(3)
        self.kv_poll(); self.stamp(5)
        a.label(b2)
        self.lds_spin(self.VC0, C_QD, 4, 6)
        self.q_read(); self.stamp(4)
        self.attn_loop(); self.stamp(7)
        again = self.attn_reduce(fb); self.stamp(8)
        a("s_setprio 0")
        self.final_pre()
        a("s_barrier"); self.stamp(12)
        self.final_post()
        a(f"""s_or_b32 s{sT0}, s2, s{sWave}
        s_cmp_lg_u32 s{sT0}, 0
        s_cbranch_scc1 L_fin
        v_mov_b32 v1, s{sNonce}
        s_mov_b32 s{sT0}, {WS_EPOCH}
        s_mov_b64 exec, 1
        buffer_store_dword v1, off, s[{rWS}:{rWS+3}], s{sT0} sc1""")
        a.label("L_fin")
        if o.stamps: a("s_mov_b64 exec, -1\ns_waitcnt vmcnt(0)"); self.stamp(13); self.stamp_flush()
        a("s_endpgm")
        self.fallback(fb, again)
        a.label(G)
        a.vm.reset(); a.lg.reset()
        self.stage_kq(); self.stamp(0)
        a.vm.wait("wq")
        self.lds_add(self.GCN, C_LN, 9); self.stamp(1)
        self.g_setup()
        a("s_setprio 3")
        self.lds_spin(self.GCN, C_QD, 8, 8, sleep=2, byte=1)
        if o.gwait:
            for q in range(4): self.lds_spin(self.GCN, C_KV + 4*q, 1, 8, sleep=1)
        a(f"s_setprio {o.prioG}"); self.stamp(2)
        self.ffn1(); self.stamp(4)
        self.h_wait(); self.stamp(5)
        self.ffn2()
        a("s_barrier"); self.stamp_flush()
        a.label(end); a("s_endpgm")

    def kz(self, name):
        a = self.a
        wave, idx, mode = self.o.readout.split(","); wave = int(wave); idx = int(idx)
        self.kernel_begin(name)
        end = name + "_end"
        a(f"s_cmp_lg_u32 s2, 0\ns_cbranch_scc1 {end}")
        self.prologue(end); a("s_waitcnt lgkmcnt(0)"); self.srd(rWS, pWS, WS_BYTES)
        a(f"s_cmp_lg_u32 s{sWave}, 0\ns_cbranch_scc1 {end}")
        a(f"v_mul_u32_u24 v1, {12*128}, v0\ns_mov_b32 s{sT0}, {WS_STAMP + wave*128 + idx*4}")
        for i in range(4): a(f"buffer_load_dword v{8+i}, v1, s[{rWS}:{rWS+3}], s{sT0} offen sc1\ns_add_u32 s{sT0}, s{sT0}, {64*12*128}")
        a("s_waitcnt vmcnt(0)")
        for i in range(1, 4): a(f"v_{mode}_u32 v8, v8, v{8+i}")
        a("s_nop 1\nv_readlane_b32 s64, v8, 0")
        for l in range(1, 64): a(f"v_readlane_b32 s65, v8, {l}\ns_nop 0\ns_{mode}_u32 s64, s64, s65")
        a("s_add_u32 s64, s64, 10000")
        sp = a.newlabel("spin"); a.label(sp)
        a(f"s_memrealtime s[66:67]\ns_waitcnt lgkmcnt(0)\ns_sub_u32 s68, s66, s64\ns_cmp_lt_i32 s68, 0\ns_cbranch_scc1 {sp}")
        a.label(end); a("s_endpgm")

def descriptor(name):
    return f""".amdhsa_kernel {name}
  .amdhsa_next_free_vgpr {NV}
  .amdhsa_next_free_sgpr 96
  .amdhsa_accum_offset {NV}
  .amdhsa_group_segment_fixed_size 0
  .amdhsa_kernarg_size 104
  .amdhsa_user_sgpr_count 2
  .amdhsa_user_sgpr_kernarg_segment_ptr 1
  .amdhsa_system_sgpr_workgroup_id_x 1
.end_amdhsa_kernel
"""

def options(argv=None):
    ap = argparse.ArgumentParser()
    ap.add_argument("-o", default="fused.s")
    ap.add_argument("--stamps", nargs="?", const="rt", default=None)
    ap.add_argument("--nomimic", dest="mimic", action="store_false")
    ap.add_argument("--readout", default=None)
    ap.add_argument("--fstride", type=int, default=16)
    ap.add_argument("--wkat", type=int, default=7); ap.add_argument("--polldelay", default="qd"); ap.add_argument("--gwait", type=int, default=1); ap.add_argument("--nokv", type=int, default=0)
    ap.add_argument("--burst1", type=int, default=4); ap.add_argument("--burst2", type=int, default=4)
    ap.add_argument("--depth1", type=int, default=8); ap.add_argument("--depth2", type=int, default=6)
    ap.add_argument("--kvsleep", type=int, default=1)
    ap.add_argument("--prioA", type=lambda s: tuple(map(int, s.split(","))), default=(2, 1))
    ap.add_argument("--prioLow", type=int, default=0)
    ap.add_argument("--prioG", type=int, default=0); ap.add_argument("--prioG2", type=int, default=0)
    ap.add_argument("--flip", type=int, default=1)
    ap.add_argument("--pf1", default="no"); ap.add_argument("--pf2", default="no"); ap.add_argument("--pf3", type=int, default=0)
    return ap.parse_args(argv)

def build(o):
    g = Gen(o); a = g.a
    k = NAME + "_kernel"
    geo = f"grid=(256,1,1) block=(768,1,1) lds={LDS_BYTES}"
    ks = {k: g.fused}
    if o.readout:
        ks["kz_kernel"] = g.kz
        head = f"; @launch kernel={k} {geo}\n; @launch kernel=kz_kernel grid=(256,1,1) block=(64,1,1) lds=0\n"
    else:
        head = f"; @launch {geo}\n"
    head += '.amdgcn_target "amdgcn-amd-amdhsa--gfx950"\n.text\n'
    for n, fn in ks.items(): fn(n)
    for p in lint(a.lines): print("LINT:", p, file=sys.stderr)
    tail = '.section .rodata,"a"\n' + "".join(".p2align 6\n" + descriptor(n) for n in ks)
    return head + a.text() + tail

if __name__ == "__main__":
    o = options()
    open(o.o, "w").write(build(o))
    print("wrote", o.o)
```
